```python
import torch

def _softmax(x, axis=-1):
    return torch.softmax(x, dim=axis)

def _gelu(x):
    return torch.nn.functional.gelu(x, approximate='tanh')

def _silu(x):
    return torch.nn.functional.silu(x)

def _sigmoid(x):
    return torch.sigmoid(x)

def _layernorm(x, axis=-1, eps=1e-05):
    m = x.mean(dim=axis, keepdim=True)
    v = x.var(dim=axis, keepdim=True, unbiased=False)
    return (x - m) / torch.sqrt(v + eps)

def _scatter_add(tgt, idx, src, axis=0):
    return tgt.clone().index_add_(axis, idx, src)

def _segment_sum(src, seg, n):
    out = torch.zeros((n,) + src.shape[1:], dtype=src.dtype)
    return out.index_add_(0, seg, src)

def _pad(x, pw):
    flat = tuple((v for pair in reversed(pw) for v in pair))
    return torch.nn.functional.pad(x, flat)
kernel_name = 'concat_heads__linear_attn_block__memory_aug_recurrent_mem_tr__prompt'

def setup_inputs():

    _w = lambda a: (lambda t: t.to(torch.bfloat16) if t.is_floating_point() else t)(torch.as_tensor(a))

    def _A_setup():
        B, S, D = (1, 2048, 512)
        return {'x': _w((lambda *s: torch.randn(*s, dtype=torch.bfloat16) * 0.05)(B, S, D)), 'wqkv': _w((lambda *s: torch.randn(*s, dtype=torch.bfloat16) * 0.4)(D, 3 * D)), 'wo': _w((lambda *s: torch.randn(*s, dtype=torch.bfloat16) * 0.1)(D, D))}
    _A_in = _A_setup()

    def _B_setup():
        B, S, Dm = (1, 2048, 512)
        H, Dh = (32, 128)
        M, seg = (8, 32)
        seg = min(seg, S)
        S = S // seg * seg
        return {'x': _w((lambda *s: torch.randn(*s, dtype=torch.bfloat16) * 0.05)(B, S, Dm)), 'mem0': _w((lambda *s: torch.randn(*s, dtype=torch.bfloat16) * 0.4)(B, M, Dm)), 'Wq': _w((lambda *s: torch.randn(*s, dtype=torch.bfloat16) * 6.4)(Dm, H, Dh) * Dm ** (-0.5)), 'Wk': _w((lambda *s: torch.randn(*s, dtype=torch.bfloat16) * 6.4)(Dm, H, Dh) * Dm ** (-0.5)), 'Wv': _w((lambda *s: torch.randn(*s, dtype=torch.bfloat16) * 0.4)(Dm, H, Dh) * Dm ** (-0.5)), 'Wo': _w((lambda *s: torch.randn(*s, dtype=torch.bfloat16) * 0.4)(H, Dh, Dm) * (H * Dh) ** (-0.5)), 'seg_len': seg}
    _B_in = _B_setup()
    return {'A_x': _A_in['x'], 'A_wqkv': _A_in['wqkv'], 'A_wo': _A_in['wo'], 'B_x': _B_in['x'], 'B_mem0': _B_in['mem0'], 'B_Wq': _B_in['Wq'], 'B_Wk': _B_in['Wk'], 'B_Wv': _B_in['Wv'], 'B_Wo': _B_in['Wo'], 'B_seg_len': _B_in['seg_len']}

def reference(A_x, A_wqkv, A_wo, B_x, B_mem0, B_Wq, B_Wk, B_Wv, B_Wo, B_seg_len):

    def _A_ref(x, wqkv, wo):
        B, S, D = x.shape
        H = 32
        Dh = D // H
        qkv = (lambda x, *d: x.permute(*d))((x @ wqkv).reshape(B, S, 3, H, Dh), 2, 0, 3, 1, 4)
        q, k, v = (qkv[0], qkv[1], qkv[2])
        phi = lambda t: torch.where(t > 0, t + 1, torch.exp(t)) + 1e-06
        pq, pk = (phi(q), phi(k))
        kv = torch.einsum('bhsd,bhse->bhde', pk, v)
        z = torch.einsum('bhsd->bhd', pk)
        num = torch.einsum('bhqd,bhde->bhqe', pq, kv)
        den = torch.einsum('bhqd,bhd->bhq', pq, z)[..., None] + 1e-06
        o = num / den
        return (lambda x, *d: x.permute(*d))(o, 0, 2, 1, 3).reshape(B, S, D) @ wo

    def _B_ref(x, mem0, Wq, Wk, Wv, Wo, seg_len):
        B, S, Dm = x.shape
        H, Dh = (Wq.shape[1], Wq.shape[2])
        M = mem0.shape[1]
        scale = Dh ** (-0.5)
        n_seg = S // seg_len
        L = M + seg_len
        idx = torch.arange(L)
        mask = (idx[:, None] < M) | (idx[:, None] >= idx[None, :])
        mem = mem0
        outs = []
        for s in range(n_seg):
            xs = x[:, s * seg_len:(s + 1) * seg_len, :].clone()
            h = torch.concatenate([mem, xs], axis=1)
            q = torch.einsum('btd,dhe->bhte', h, Wq)
            k = torch.einsum('btd,dhe->bhte', h, Wk)
            v = torch.einsum('btd,dhe->bhte', h, Wv)
            scores = torch.einsum('bhqe,bhke->bhqk', q, k) * scale
            scores = torch.where(mask[None, None], scores, -1000000000.0)
            p = _softmax(scores, axis=-1)
            o = torch.einsum('bhqk,bhke->bhqe', p, v)
            o = torch.einsum('bhte,hed->btd', o, Wo)
            mem = o[:, :M, :].clone()
            outs.append(o[:, M:, :])
        return torch.concatenate(outs, axis=1)
    a = _A_ref(A_x, A_wqkv, A_wo)
    b = _B_ref(B_x, B_mem0, B_Wq, B_Wk, B_Wv, B_Wo, B_seg_len)
    return torch.concatenate([a, b], axis=-1)
```

```python
import re

def V(n, c=1):
    return f"v{n}" if c == 1 else f"v[{n}:{n+c-1}]"
def A(n, c=1):
    return f"a{n}" if c == 1 else f"a[{n}:{n+c-1}]"
def S(n, c=1):
    return f"s{n}" if c == 1 else f"s[{n}:{n+c-1}]"

_reg_re = re.compile(r"^-?(?:abs\(|\|)?([vas])(?:(\d+)|\[(\d+):(\d+)\])\)?\|?$")

def regs_of(op):
    op = op.strip()
    if op == "vcc": return {("s", "vcc")}
    if op == "exec": return {("s", "exec")}
    if op == "m0": return {("s", "m0")}
    m = _reg_re.match(op)
    if not m: return set()
    k = m.group(1)
    if m.group(2) is not None:
        return {(k, int(m.group(2)))}
    return {(k, i) for i in range(int(m.group(3)), int(m.group(4)) + 1)}

TRANS = ("v_exp_f32", "v_log_f32", "v_rcp_f32", "v_rsq_f32", "v_sqrt_f32", "v_sin_f32", "v_cos_f32")

class Ins:
    pass

def split_ops(s):
    out, depth, cur = [], 0, ""
    for ch in s:
        if ch in "[(": depth += 1
        if ch in "])": depth -= 1
        if ch == "," and depth == 0:
            out.append(cur.strip()); cur = ""
        else:
            cur += ch
    if cur.strip(): out.append(cur.strip())
    return out

def decode(text):
    i = Ins()
    t = text.split(";")[0].strip()
    parts = t.split(None, 1)
    mn = parts[0]
    rest = parts[1] if len(parts) > 1 else ""
    ops = split_ops(rest)
    mods = ""
    if ops:
        last = ops[-1].split(None, 1)
        ops[-1] = last[0]
        mods = last[1] if len(last) > 1 else ""
    i.mn, i.ops, i.mods = mn, ops, mods
    i.kind = "other"; i.w = set(); i.r = set(); i.srcC = set(); i.srcAB = set()
    i.dpp = False; i.trans = False; i.perm = False; i.rdlane = False; i.widestore = set(); i.ldsdma = False
    i.states = 1; i.passes = 0
    R = lambda lst: set().union(*[regs_of(o) for o in lst]) if lst else set()
    if mn.startswith("v_mfma") or mn.startswith("v_smfmac"):
        i.kind = "mfma"
        i.passes = 8 if "32x32" in mn else 4
        i.w = regs_of(ops[0])
        if mn.startswith("v_smfmac"):
            i.srcC = regs_of(ops[0]); i.srcAB = R(ops[1:4])
        else:
            i.srcC = regs_of(ops[3]); i.srcAB = R(ops[1:3])
        i.r = i.srcC | i.srcAB
    elif mn.startswith("v_"):
        i.kind = "valu"
        base = mn.replace("_e32", "").replace("_e64", "").replace("_dpp", "")
        i.trans = base in TRANS
        i.dpp = mn.endswith("_dpp") or "row_" in mods or "quad_perm" in mods
        if mn.startswith("v_permlane"):
            i.perm = True; i.w = R(ops[:2]); i.r = R(ops[:2])
        elif mn.startswith("v_readfirstlane") or mn.startswith("v_readlane"):
            i.rdlane = True; i.w = regs_of(ops[0]); i.r = R(ops[1:])
        elif mn.startswith("v_cmp"):
            i.w = regs_of(ops[0]); i.r = R(ops[1:])
        elif mn.startswith("v_nop"):
            pass
        else:
            i.w = regs_of(ops[0]); i.r = R(ops[1:])
            if base.startswith("v_add_co") or base.startswith("v_addc_co") or base.startswith("v_sub_co"):
                i.w |= regs_of(ops[1])
            if base.startswith("v_fmac") or base.startswith("v_mac") or i.dpp:
                i.r |= regs_of(ops[0])
    elif mn.startswith("ds_"):
        i.kind = "ds"
        if mn.startswith("ds_read") or mn.startswith("ds_bpermute") or mn.startswith("ds_swizzle"):
            i.w = regs_of(ops[0]); i.r = R(ops[1:])
        else:
            i.r = R(ops)
    elif mn.startswith("buffer_") or mn.startswith("global_"):
        i.kind = "vmem"
        lds = re.search(r"\blds\b", mods) is not None
        if mn.startswith("buffer_load") and lds:
            i.ldsdma = True; i.r = R(ops) | {("s", "m0")}
        elif mn.startswith("buffer_load"):
            i.w = regs_of(ops[0]); i.r = R(ops[1:])
        elif mn.startswith("buffer_store"):
            i.r = R(ops)
            if "x3" in mn or "x4" in mn: i.widestore = regs_of(ops[0])
        elif mn.startswith("buffer_atomic"):
            i.r = R(ops)
            if re.search(r"\bsc0\b", mods): i.w = regs_of(ops[0])
        else:
            i.r = R(ops)
    elif mn.startswith("s_"):
        i.kind = "salu"
        if mn == "s_nop":
            i.states = int(ops[0], 0) + 1
        elif mn.startswith("s_cmp") or mn.startswith("s_bitcmp") or mn.startswith("s_cbranch") or mn in ("s_branch", "s_barrier", "s_waitcnt", "s_sleep", "s_endpgm", "s_setprio"):
            i.r = R(ops)
        else:
            if ops: i.w = regs_of(ops[0]); i.r = R(ops[1:])
            if "saveexec" in mn: i.w |= {("s", "exec")}
    return i

def vec(rs): return {r for r in rs if r[0] in "va"}
def sca(rs): return {r for r in rs if r[0] == "s"}

def need(p, c):
    n = 0
    if p.kind == "valu":
        pw_v, pw_s = vec(p.w), sca(p.w)
        if c.kind == "mfma" and (pw_v & c.r): n = max(n, 2)
        if c.kind == "valu":
            if c.dpp and (pw_v & c.r): n = max(n, 2)
            if c.perm and (pw_v & c.r): n = max(n, 2)
            if c.rdlane and (pw_v & c.r): n = max(n, 1)
            if p.trans and not c.trans and (pw_v & c.r): n = max(n, 1)
            if pw_s & c.r: n = max(n, 4 if c.rdlane else 2)
        if c.kind == "vmem" and (pw_s & c.r): n = max(n, 5)
    if p.kind == "mfma":
        big = p.passes == 8
        if c.kind == "mfma":
            if p.w & c.srcAB: n = max(n, 12 if big else 8)
            if p.w & c.srcC:
                if not (p.w == c.srcC and p.mn == c.mn): n = max(n, 10 if big else 6)
            elif p.w & c.w:
                n = max(n, 10 if big else 6)
        elif c.kind in ("valu", "ds", "vmem"):
            if p.w & (c.r | c.w): n = max(n, 12 if big else 8)
            if c.kind == "valu" and (p.srcC & c.w): n = max(n, 7 if big else 3)
    if p.kind == "vmem" and p.widestore:
        if p.widestore & c.w: n = max(n, 2)
    if p.kind == "salu" and ("s", "m0") in p.w and c.ldsdma: n = max(n, 1)
    return n

class Asm:
    def __init__(self):
        self.lines = []
        self.hist = []
        self.t = 0
        self.last_mfma = None
        self.nops = 0
        self.uid = 0
    def raw(self, s):
        self.lines.append(s)
    def label(self, name):
        self.lines.append(f"{name}:")
    def newlabel(self, base):
        self.uid += 1
        return f"L_{base}_{self.uid}"
    def comment(self, s):
        self.lines.append(f"    ; {s}")
    def __call__(self, text):
        for ln in text.split("\n"):
            ln = ln.strip()
            if not ln: continue
            if ln.startswith(";"):
                self.lines.append("    " + ln); continue
            if ln.endswith(":"):
                self.lines.append(ln); continue
            self.ins(ln)
    def _dist(self, k, c):
        d = 0; lm = None
        h = self.hist
        for j in range(k, len(h)):
            ins = h[j]
            if j > k:
                d = d + h[j-1].states
                if ins.kind == "mfma" and lm is not None: d = max(d, lm[0] + lm[1])
            if ins.kind == "mfma": lm = (d, ins.passes)
        plain = d + h[-1].states
        full = plain
        if c.kind == "mfma" and lm is not None: full = max(full, lm[0] + lm[1])
        return plain, full
    def ins(self, text):
        c = decode(text)
        pad = 0
        for k, p in enumerate(self.hist):
            n = need(p, c)
            if n:
                plain, full = self._dist(k, c)
                if full < n + 1:
                    pad = max(pad, n + 1 - plain)
        while pad > 0:
            m = min(pad, 16)
            self.lines.append(f"    s_nop {m-1}")
            self.hist.append(decode(f"s_nop {m-1}"))
            self.nops += 1
            pad -= m
        self.lines.append("    " + text)
        self.hist.append(c)
        self.hist = self.hist[-20:]
    def text(self):
        return "\n".join(self.lines) + "\n"
```

```python
from asmlib import *

L_VX, L_S, L_VM = 131072, 131072 + 16384, 131072 + 16384 + 6144
ORDER = [0, 2, 4, 6, 1, 3, 5, 7]
WIN = 4

def gen_r(a, g, opts):
    if opts.get("no_r"):
        return
    MF, SM = g.MF, g.SM
    sWV, sWS, sBUD = g.sWV, g.sWS, g.sBUD
    sH = g.sTK
    sLB, sT0, sT1, sT2 = "s28", "s29", "s30", "s31"
    sS, sRC, sRN, sTAG = "s32", "s33", "s34", "s35"
    sKX, sKM, sVXB, sINB = "s36", "s37", "s38", "s39"
    sMASK = S(40, 2)
    sEXLO, sEXHI = S(42, 2), S(44, 2)
    sSC, sVXG = "s46", "s47"
    vL = "v0"
    vIDX, vMEM, vL16, vL16W, vINST, vPUB, vSW, vSRX, vSRM, vKMST, vVXR = ["v%d" % i for i in range(1, 12)]
    SEL1, SELR = 12, 16
    MEM, KST, AQ, AK, KX, SP = 20, 52, 100, 108, 116, 124
    prof = opts.get("prof")
    def stamp(k):
        if prof:
            a(f"s_memtime {S(48 + 2*k, 2)}")
    vOFF, vOFO, vN0, vN1, vI, vT0, vT1, vT2 = ["v%d" % i for i in range(100, 108)]
    a(f"s_lshl_b32 {sLB}, {sWV}, 15")
    a(f"s_lshl_b32 {sT0}, {sH}, 8")
    a(f"s_lshl_b32 {sT1}, {sWV}, 6")
    a(f"s_add_u32 {sT2}, {sT0}, {sT1}")
    g.loader_voff(a, vOFF, vL, "sparse", 8192, True, sT2, vT0, vT1, sT0)
    a(f"s_lshl_b32 {sT0}, {sH}, 17")
    a(f"s_lshl_b32 {sT1}, {sWV}, 8")
    a(f"s_add_u32 {sT2}, {sT0}, {sT1}")
    g.loader_voff(a, vOFO, vL, "rwo", 1024, False, sT2, vT0, vT1, sT0)
    g.loader_traddr(a, vN0, vN1, vI, vL, sLB, vT0, vT1)
    a(f"v_lshlrev_b32 {vL16}, 4, {vL}")
    a(f"v_add_u32 {vL16W}, {sLB}, {vL16}")
    WB = 512 * 8192
    stages = []
    for s in range(8): stages.append(g.Stage(g.P_WQ, WB, vOFF, "sparse", 8192, 64 * s, 0, True, ("v", 128 + 16 * s)))
    for s in range(8): stages.append(g.Stage(g.P_WV, WB, vOFF, "sparse", 8192, 64 * s, 0, True, ("a", 16 * s)))
    for ks in range(2):
        for q in range(4):
            stages.append(g.Stage(g.P_WO, 4096 * 1024, vOFO, "rwo", 1024, 64 * ks, 64 * q, False, ("a", 128 + 64 * ks + 16 * q)))
    for s in range(8): stages.append(g.Stage(g.P_WK, WB, vOFF, "sparse", 8192, 64 * s, 0, True, ("v", 52), keep=True))

    def consts():
        c, gg = "v20", "v21"
        a(f"v_and_b32 {c}, 15, {vL}")
        a(f"v_lshrrev_b32 {gg}, 4, {vL}")
        a(f"v_mov_b32 v22, 0x4444")
        a(f"v_mov_b32 v23, 0xeeee")
        a(f"v_cmp_gt_u32 vcc, 8, {c}")
        a(f"s_mov_b64 {sEXLO}, vcc")
        a(f"s_not_b64 {sEXHI}, vcc")
        a(f"v_cndmask_b32 {vIDX}, v23, v22, vcc")
        a(f"v_and_b32 v22, 7, {c}")
        a(f"v_lshlrev_b32 {vMEM}, 10, v22")
        a(f"v_lshl_add_u32 {vMEM}, {gg}, 5, {vMEM}")
        a(f"v_lshrrev_b32 v23, 3, {c}")
        a(f"v_lshl_add_u32 {vMEM}, v23, 4, {vMEM}")
        a(f"s_lshl_b32 {sT0}, {sWV}, 16")
        a(f"s_lshl_b32 {sT1}, {sH}, 8")
        a(f"s_add_u32 {sT0}, {sT0}, {sT1}")
        a(f"s_add_u32 {sT0}, {sT0}, {g.INBOX}")
        a(f"v_lshlrev_b32 {vINST}, 13, {gg}")
        a(f"v_lshl_add_u32 {vINST}, {c}, 4, {vINST}")
        a(f"v_add_u32 {vINST}, {sT0}, {vINST}")
        a(f"s_and_b32 {sT0}, {sH}, 1")
        a(f"s_lshl_b32 {sT0}, {sT0}, 12")
        a(f"s_lshr_b32 {sT1}, {sH}, 1")
        a(f"s_lshl_b32 {sT1}, {sT1}, 6")
        a(f"s_add_u32 {sT0}, {sT0}, {sT1}")
        a(f"v_lshrrev_b32 v23, 1, v22")
        a(f"v_lshlrev_b32 {vPUB}, 10, v23")
        a(f"v_lshl_add_u32 {vPUB}, {gg}, 4, {vPUB}")
        a(f"v_and_b32 v23, 1, {c}")
        a(f"v_lshl_add_u32 {vPUB}, v23, 3, {vPUB}")
        a(f"v_add_u32 {vPUB}, {sT0}, {vPUB}")
        a(f"v_lshl_add_u32 v23, {gg}, 3, v22")
        a(f"v_lshlrev_b32 v23, 4, v23")
        a(f"s_mul_i32 {sT0}, {sWV}, 1536")
        a(f"s_add_u32 {sT0}, {sT0}, {L_S}")
        a(f"v_add_u32 {vSW}, {sT0}, v23")
        a(f"s_lshl_b32 {sT0}, {sWV}, 9")
        a(f"v_add_u32 {vKMST}, {sT0}, v23")
        a(f"v_lshrrev_b32 v24, 3, {c}")
        a(f"v_lshlrev_b32 v24, 9, v24")
        a(f"v_add_u32 v24, {L_S}, v24")
        a(f"v_add_u32 {vSRX}, v24, v23")
        a(f"v_and_b32 v24, 1, {gg}")
        a(f"v_lshl_add_u32 v24, v24, 3, v22")
        a(f"v_lshlrev_b32 v24, 4, v24")
        a(f"v_add_u32 {vSRM}, {L_S + 1024 + 256}, v24")
        a(f"v_and_b32 v24, 1, {gg}")
        a(f"v_lshlrev_b32 v24, 2, v24")
        a(f"v_sub_u32 v24, {c}, v24")
        a(f"v_mov_b32 v25, 0x3f80")
        a(f"v_mov_b32 v26, 0x3f800000")
        a(f"v_mov_b32 v27, 0")
        for q in range(4):
            i0 = 2 * q
            k0 = (i0 & 3) + 8 * (i0 >> 2)
            a(f"v_cmp_eq_u32 vcc, {k0}, v24")
            a(f"v_cndmask_b32 {V(SEL1 + q)}, v27, v25, vcc")
            a(f"v_cmp_eq_u32 vcc, {k0 + 1}, v24")
            a(f"v_cndmask_b32 {V(SEL1 + q)}, {V(SEL1 + q)}, v26, vcc")
        for q in range(4):
            a(f"v_cmp_eq_u32 vcc, {2*q}, {c}")
            a(f"v_cndmask_b32 {V(SELR + q)}, v27, v25, vcc")
            a(f"v_cmp_eq_u32 vcc, {2*q + 1}, {c}")
            a(f"v_cndmask_b32 {V(SELR + q)}, {V(SELR + q)}, v26, vcc")
        a(f"s_mov_b32 {sSC}, {g.SCALE_B}")
        a(f"s_lshl_b32 {sINB}, {sH}, 13")
        a(f"s_add_u32 {sINB}, {sINB}, {g.INBOX}")

    def clear():
        a("v_mov_b32 v20, 0"); a("v_mov_b32 v21, 0"); a("v_mov_b32 v22, 0"); a("v_mov_b32 v23, 0")
        a("v_mov_b32 v24, -1"); a("v_mov_b32 v25, -1")
        a(f"s_lshl_b32 {sT0}, {sWV}, 11")
        a(f"s_add_u32 {sT0}, {sT0}, {sINB}")
        a(f"buffer_store_dwordx4 v[20:23], {vL16}, {sWS}, {sT0} offen")
        a(f"buffer_store_dwordx4 v[20:23], {vL16}, {sWS}, {sT0} offen offset:1024")
        for k in range(3):
            a(f"s_mov_b32 {sT0}, {g.RING + 8192*k}")
            a(f"buffer_store_dwordx2 v[24:25], {vPUB}, {sWS}, {sT0} offen")

    def arrive():
        a("s_barrier")
        L = a.newlabel("arr")
        a(f"s_cmp_lg_u32 {sWV}, 0")
        a(f"s_cbranch_scc1 {L}")
        a(f"v_mov_b32 v20, {g.D_RBAR}")
        a(f"v_mov_b32 v21, 1")
        a("s_mov_b64 exec, 1")
        a(f"buffer_atomic_add v21, v20, {g.sDBG}, 0 offen")
        a("s_mov_b64 exec, -1")
        a.label(L)
    hooks = {0: (consts, 0), 15: (clear, 5), 24: (arrive, 0)}
    g.run_loader(a, stages, sLB, vN0, vN1, vI, sT0, l16w=vL16W, hooks=hooks, nt=opts.get("rnt", "nt"))
    g.wait_zdone(a, "v20", "v21")
    a(f"v_mov_b32 v20, {g.D_RBAR}")
    g.poll(a, g.sDBG, "v20", "v21", "v_cmp_gt_u32", 32)
    a(f"s_mov_b32 {sS}, 0")
    a(f"s_mov_b32 {sRC}, {g.RING}")
    a(f"s_mov_b32 {sRN}, {g.RING + 8192}")
    a(f"s_mov_b32 {sTAG}, 1")
    a(f"s_mul_i32 {sKX}, {sH}, {64 * 24576}")
    a(f"s_lshl_b32 {sT0}, {sWV}, 11")
    a(f"s_add_u32 {sKX}, {sKX}, {sT0}")
    a(f"s_add_u32 {sKX}, {sKX}, {g.QKV + 8192}")
    a(f"s_lshl_b32 {sKM}, {sH}, 19")
    a(f"s_add_u32 {sKM}, {sKM}, {g.KMVM}")
    a(f"s_mov_b32 {sVXB}, {L_VX}")
    a(f"s_mov_b64 {sMASK}, 0")

    def kv_ready(sidx, vt0, vt1):
        L = a.newlabel("kvp"); D = a.newlabel("kvd")
        a(f"s_bitcmp1_b64 {sMASK}, {sidx}")
        a(f"s_cbranch_scc1 {D}")
        a(f"s_lshl_b32 {sT0}, {sH}, 8")
        a(f"v_lshlrev_b32 {vt0}, 2, {vL}")
        a.label(L)
        a(f"buffer_load_dword {vt1}, {vt0}, {sWS}, {sT0} offen offset:{g.KVFLAG} sc1")
        a(f"s_sub_u32 {sBUD}, {sBUD}, 1")
        a("s_cbranch_scc1 L_exit")
        a("s_waitcnt vmcnt(0)")
        a(f"v_cmp_eq_u32 {sMASK}, 1, {vt1}")
        a("s_nop 3")
        a(f"s_bitcmp1_b64 {sMASK}, {sidx}")
        a(f"s_cbranch_scc0 {L}")
        a.label(D)

    def prefetch_kxvx(sbuf):
        a(f"buffer_load_dwordx4 {V(KX, 4)}, {vL16}, {sWS}, {sKX} offen sc1")
        a(f"buffer_load_dwordx4 {V(KX + 4, 4)}, {vL16}, {sWS}, {sKX} offen offset:1024 sc1")
        a(f"s_lshl_b32 {sT0}, {sWV}, 11")
        a(f"s_add_u32 m0, {sT0}, {sbuf}")
        a(f"s_add_u32 {sT1}, {sKX}, 8192")
        a(f"buffer_load_dwordx4 {vL16}, {sWS}, {sT1} offen sc1 lds")
        a(f"buffer_load_dwordx4 {vL16}, {sWS}, {sT1} offen offset:1024 sc1 lds")
        a(f"s_add_u32 {sKX}, {sKX}, 24576")

    def kread(pos):
        k = ORDER[pos]; slot = KST + 16 * (pos % 3)
        for q in range(4):
            a(f"ds_read_b128 {V(slot + 4*q, 4)}, {vL16W} offset:{k*4096 + q*1024}")

    def pre_step():
        for p in range(3): kread(p)
        for r in range(0, 16, 2): a(f"v_mov_b64 {V(AQ + r, 2)}, 0")

    def mload(pos):
        k = ORDER[pos]
        a(f"buffer_load_dwordx4 {V(MEM + 4*k, 4)}, {vMEM}, {sWS}, {sRC} offen offset:{128*k} sc1")

    kv_ready(sS, "v20", "v21")
    prefetch_kxvx(sVXB)
    a("s_waitcnt lgkmcnt(0)")
    pre_step()
    a(f"s_cmp_lg_u32 {sWV}, 0")
    a("s_cbranch_scc1 L_r_b3")
    g.srd(a, 16, g.P_MEM0, 8192)
    a(f"buffer_load_dwordx2 {V(SP, 2)}, {vPUB}, {g.sX}, 0 offen")
    a("s_waitcnt vmcnt(0)")
    a(f"v_min_u32 {V(SP)}, 0xfffffffe, {V(SP)}")
    a(f"s_mov_b64 exec, {sEXLO}")
    a(f"buffer_store_dwordx2 {V(SP, 2)}, {vPUB}, {sWS}, {sRC} offen")
    a("s_mov_b64 exec, -1")
    a.label("L_r_b3")
    a("s_barrier")
    stamp(0)
    if opts.get("d3"): a(f"s_sleep {opts['d3']}")
    vC = V(SP)
    def check(pos):
        k = ORDER[pos]
        a(f"v_max_u32 {vC}, {V(MEM + 4*k)}, {V(MEM + 4*k + 2)}")
        a(f"v_cmp_eq_u32 vcc, -1, {vC}")
    def inflight_after(pos):
        return min(7, pos + WIN - 1) - pos
    a.label("L_r_retry0")
    for p in range(WIN): mload(p)
    a(f"s_sub_u32 {sBUD}, {sBUD}, 1")
    a("s_cbranch_scc1 L_exit")
    a(f"s_waitcnt vmcnt({inflight_after(0)})")
    check(0)
    a("s_cbranch_vccnz L_r_retry0")
    stamp(1)
    VA = KST + 32
    for pos in range(8):
        k = ORDER[pos]; slot = KST + 16 * (pos % 3)
        M = V(MEM + 4*k, 4)
        if pos + WIN <= 7: mload(pos + WIN)
        nl = 4 * (min(7, pos + 2) - pos)
        a(f"s_waitcnt lgkmcnt({nl})")
        a(f"{SM} {V(AK, 4)}, {M}, {V(slot, 8)}, {vIDX}")
        a(f"{SM} {V(AK + 4, 4)}, {M}, {V(slot + 8, 8)}, {vIDX}")
        if pos + 3 <= 7: kread(pos + 3)
        if pos == 6:
            for r in range(0, 8, 2): a(f"v_mov_b64 {V(VA + r, 2)}, 0")
        a(f"{SM} {V(AQ, 4)}, {M}, {V(128 + 16*k, 8)}, {vIDX}")
        if pos < 7:
            a(f"s_waitcnt vmcnt({inflight_after(pos + 1)})")
            check(pos + 1)
        a(f"{SM} {V(AQ + 4, 4)}, {M}, {V(128 + 16*k + 8, 8)}, {vIDX}")
        if pos < 7:
            a(f"s_cbranch_vccnz L_r_retry{pos + 1}")
            a.label(f"L_r_ok{pos + 1}")
    stamp(2)
    vq = [(ORDER[p], t) for p in range(8) for t in range(2)]
    def vm(n=1):
        for _ in range(n):
            if vq:
                k, t = vq.pop(0)
                a(f"{SM} {V(VA + 4*t, 4)}, {V(MEM + 4*k, 4)}, {A(16*k + 8*t, 8)}, {vIDX}")
    AT, D2, QK, SS = KST, KST + 8, KST + 16, KST + 20
    vm(1)
    a(f"v_cvt_pk_bf16_f32 {V(AT + 2)}, {V(AK)}, {V(AK + 1)}")
    a(f"v_cvt_pk_bf16_f32 {V(AT + 3)}, {V(AK + 2)}, {V(AK + 3)}")
    vm(1)
    a(f"v_cvt_pk_bf16_f32 {V(AT + 6)}, {V(AK + 4)}, {V(AK + 5)}")
    a(f"v_cvt_pk_bf16_f32 {V(AT + 7)}, {V(AK + 6)}, {V(AK + 7)}")
    a(f"v_cvt_pk_bf16_f32 {V(AT + 0)}, {V(AQ)}, {V(AQ + 1)}")
    a(f"v_cvt_pk_bf16_f32 {V(AT + 1)}, {V(AQ + 2)}, {V(AQ + 3)}")
    a(f"v_cvt_pk_bf16_f32 {V(AT + 4)}, {V(AQ + 4)}, {V(AQ + 5)}")
    a(f"v_cvt_pk_bf16_f32 {V(AT + 5)}, {V(AQ + 6)}, {V(AQ + 7)}")
    a(f"{MF} {V(D2, 4)}, {V(AT, 4)}, {V(SEL1, 4)}, 0")
    a(f"{MF} {V(D2 + 4, 4)}, {V(AT + 4, 4)}, {V(SEL1, 4)}, 0")
    vm(1)
    a(f"v_cvt_pk_bf16_f32 {V(QK)}, {V(D2)}, {V(D2 + 1)}")
    a(f"v_cvt_pk_bf16_f32 {V(QK + 1)}, {V(D2 + 2)}, {V(D2 + 3)}")
    vm(1)
    a(f"v_cvt_pk_bf16_f32 {V(QK + 2)}, {V(D2 + 4)}, {V(D2 + 5)}")
    a(f"v_cvt_pk_bf16_f32 {V(QK + 3)}, {V(D2 + 6)}, {V(D2 + 7)}")
    a(f"{MF} {V(SS, 4)}, {V(KX, 4)}, {V(QK, 4)}, 0")
    a(f"{MF} {V(SS + 4, 4)}, {V(KX + 4, 4)}, {V(QK, 4)}, 0")
    a(f"{MF} {V(SS + 8, 4)}, {V(QK, 4)}, {V(QK, 4)}, 0")
    def masked(mask, lines):
        a(f"s_mov_b64 exec, {mask}")
        for x in lines: a(x)
        a("s_mov_b64 exec, -1")
    masked(sEXLO, [f"ds_write_b128 {vSW}, {V(SS, 4)}"])
    vm(1)
    masked(sEXLO, [f"ds_write_b128 {vSW}, {V(SS + 4, 4)} offset:512"])
    vm(1)
    masked(sEXLO, [f"ds_write_b128 {vSW}, {V(SS + 8, 4)} offset:1024"])
    vm(1)
    masked(sEXHI, [f"buffer_store_dwordx4 {V(QK, 4)}, {vKMST}, {sWS}, {sKM} offen sc1"])
    vm(1)
    a("s_waitcnt lgkmcnt(0)")
    a("s_barrier")
    stamp(3)
    PX, PMm = AQ, KST
    for w in range(4): a(f"ds_read_b128 {V(PX + 4*w, 4)}, {vSRX} offset:{1536*w}")
    for w in range(4): a(f"ds_read_b128 {V(PMm + 4*w, 4)}, {vSRM} offset:{1536*w}")
    vm(2)
    a(f"s_cmp_lg_u32 {sWV}, 1")
    a("s_cbranch_scc1 L_r_nofl")
    a(f"s_lshl_b32 {sT0}, {sH}, 7")
    a(f"s_add_u32 {sT0}, {sT0}, {g.KMFLAG}")
    a(f"v_mov_b32 {V(SP + 1)}, {sT0}")
    a(f"v_mov_b32 {V(SP + 2)}, {sS}")
    g.set_flag(a, V(SP + 1), V(SP + 2))
    a.label("L_r_nofl")
    vm(2)
    a(f"s_add_u32 {sT2}, {sS}, 1")
    a(f"s_cmp_ge_u32 {sT2}, 64")
    a("s_cbranch_scc1 L_r_nopf")
    kv_ready(sT2, V(SP + 1), V(SP + 2))
    a(f"s_xor_b32 {sT2}, {sVXB}, 8192")
    prefetch_kxvx(sT2)
    a.label("L_r_nopf")
    vm(16)
    a(f"v_add_u32 {vVXR}, {sVXB}, {vL16}")
    a("s_waitcnt lgkmcnt(4)")
    for r in range(0, 4, 2):
        a(f"v_pk_add_f32 {V(PX + r, 2)}, {V(PX + r, 2)}, {V(PX + 4 + r, 2)}")
        a(f"v_pk_add_f32 {V(PX + 8 + r, 2)}, {V(PX + 8 + r, 2)}, {V(PX + 12 + r, 2)}")
    for r in range(0, 4, 2):
        a(f"v_pk_add_f32 {V(PX + r, 2)}, {V(PX + r, 2)}, {V(PX + 8 + r, 2)}")
    a("s_waitcnt lgkmcnt(0)")
    VXR = MEM
    for t in range(8): a(f"ds_read_b128 {V(VXR + 4*t, 4)}, {vVXR} offset:{1024*t}")
    for r in range(0, 4, 2):
        a(f"v_pk_add_f32 {V(PMm + r, 2)}, {V(PMm + r, 2)}, {V(PMm + 4 + r, 2)}")
        a(f"v_pk_add_f32 {V(PMm + 8 + r, 2)}, {V(PMm + 8 + r, 2)}, {V(PMm + 12 + r, 2)}")
    for r in range(0, 4, 2):
        a(f"v_pk_add_f32 {V(PMm + r, 2)}, {V(PMm + r, 2)}, {V(PMm + 8 + r, 2)}")
    VMO = KST + 4
    g.pack8(a, VMO, VA)
    a(f"s_lshl_b32 {sT0}, {sWV}, 10")
    a(f"s_add_u32 {sT1}, {sT0}, {L_VM}")
    a(f"v_add_u32 {V(SP + 1)}, {sT1}, {vL16}")
    a(f"ds_write_b128 {V(SP + 1)}, {V(VMO, 4)}")
    a(f"s_add_u32 {sT0}, {sT0}, {sKM}")
    a(f"s_add_u32 {sT0}, {sT0}, 4096")
    a(f"buffer_store_dwordx4 {V(VMO, 4)}, {vL16}, {sWS}, {sT0} offen sc1")
    a(f"s_cmp_eq_u32 {sS}, 63")
    a("s_cbranch_scc1 L_r_last")
    mx, tm, mc, su = V(SP), V(SP + 1), V(SP + 2), V(SP + 3)
    a(f"v_max3_f32 {mx}, {V(PX)}, {V(PX + 1)}, {V(PX + 2)}")
    a(f"v_max3_f32 {tm}, {V(PMm)}, {V(PMm + 1)}, {V(PMm + 2)}")
    a(f"v_max3_f32 {mx}, {mx}, {V(PX + 3)}, {V(PMm + 3)}")
    a(f"v_max_f32 {mx}, {mx}, {tm}")
    B1, B2, B3 = KST + 8, KST + 12, KST + 16
    g.xlane_reduce(a, "v_max_f32", mx, tm, (8, 16, 32))
    a(f"v_mul_f32 {mc}, {sSC}, {mx}")
    for r in range(4): a(f"v_fma_f32 {V(PX + r)}, {V(PX + r)}, {sSC}, -{mc}")
    for r in range(4): a(f"v_exp_f32 {V(PX + r)}, {V(PX + r)}")
    for r in range(0, 12, 2): a(f"v_mov_b64 {V(B1 + r, 2)}, 0")
    E = PX + 4
    a(f"v_cvt_pk_bf16_f32 {V(E)}, {V(PX)}, {V(PX + 1)}")
    a(f"v_cvt_pk_bf16_f32 {V(E + 1)}, {V(PX + 2)}, {V(PX + 3)}")
    idn = "quad_perm:[0,1,2,3] row_mask:0xf"
    ror = "row_ror:8 row_mask:0xf"
    a(f"v_mov_b32_dpp {V(B1)}, {V(E)} {idn} bank_mask:0x3")
    a(f"v_mov_b32_dpp {V(B1 + 2)}, {V(E)} {ror} bank_mask:0x3")
    a(f"v_mov_b32_dpp {V(B1 + 1)}, {V(E + 1)} {idn} bank_mask:0x3")
    a(f"v_mov_b32_dpp {V(B1 + 3)}, {V(E + 1)} {ror} bank_mask:0x3")
    a("s_waitcnt lgkmcnt(0)")
    a("s_barrier")
    stamp(4)
    VMR = KST + 20
    a(f"v_add_u32 {tm}, {L_VM}, {vL16}")
    O = KST + 36
    Ot = [88, 92, 96, 108]
    a(f"{MF} {V(Ot[0], 4)}, {V(VXR + 0, 4)}, {V(B1, 4)}, 0")
    for p in range(4): a(f"ds_read_b128 {V(VMR + 4*p, 4)}, {tm} offset:{1024*p}")
    a(f"v_mov_b32_dpp {V(B2)}, {V(E)} {ror} bank_mask:0xc")
    a(f"v_mov_b32_dpp {V(B2 + 2)}, {V(E)} {idn} bank_mask:0xc")
    a(f"{MF} {V(Ot[1], 4)}, {V(VXR + 8, 4)}, {V(B1, 4)}, 0")
    a(f"v_mov_b32_dpp {V(B2 + 1)}, {V(E + 1)} {ror} bank_mask:0xc")
    a(f"v_mov_b32_dpp {V(B2 + 3)}, {V(E + 1)} {idn} bank_mask:0xc")
    a(f"{MF} {V(Ot[2], 4)}, {V(VXR + 16, 4)}, {V(B1, 4)}, 0")
    a(f"v_fma_f32 {V(PMm)}, {V(PMm)}, {sSC}, -{mc}")
    a(f"v_fma_f32 {V(PMm + 1)}, {V(PMm + 1)}, {sSC}, -{mc}")
    a(f"{MF} {V(Ot[3], 4)}, {V(VXR + 24, 4)}, {V(B1, 4)}, 0")
    a(f"v_fma_f32 {V(PMm + 2)}, {V(PMm + 2)}, {sSC}, -{mc}")
    a(f"v_fma_f32 {V(PMm + 3)}, {V(PMm + 3)}, {sSC}, -{mc}")
    for p in range(4):
        a(f"{MF} {V(Ot[p], 4)}, {V(VXR + 8*p + 4, 4)}, {V(B2, 4)}, {V(Ot[p], 4)}")
        a(f"v_exp_f32 {V(PMm + p)}, {V(PMm + p)}")
    EM = PX + 6
    a(f"v_add_f32 {su}, {V(PX)}, {V(PX + 1)}")
    a(f"v_cvt_pk_bf16_f32 {V(EM)}, {V(PMm)}, {V(PMm + 1)}")
    a(f"v_cvt_pk_bf16_f32 {V(EM + 1)}, {V(PMm + 2)}, {V(PMm + 3)}")
    a(f"v_add_f32 {tm}, {V(PX + 2)}, {V(PX + 3)}")
    a(f"v_mov_b32_dpp {V(B3)}, {V(EM)} {idn} bank_mask:0x3")
    a(f"v_mov_b32_dpp {V(B3 + 2)}, {V(EM)} {idn} bank_mask:0xc")
    a(f"v_mov_b32_dpp {V(B3 + 1)}, {V(EM + 1)} {idn} bank_mask:0x3")
    a(f"v_mov_b32_dpp {V(B3 + 3)}, {V(EM + 1)} {idn} bank_mask:0xc")
    a(f"v_add_f32 {su}, {su}, {tm}")
    a(f"v_add_f32 {V(PMm)}, {V(PMm)}, {V(PMm + 1)}")
    a("s_waitcnt lgkmcnt(0)")
    OUT = MEM
    a(f"{MF} {V(Ot[0], 4)}, {V(VMR, 4)}, {V(B3, 4)}, {V(Ot[0], 4)}")
    a(f"v_add_f32 {V(PMm + 2)}, {V(PMm + 2)}, {V(PMm + 3)}")
    a(f"v_add_f32 {V(PMm)}, {V(PMm)}, {V(PMm + 2)}")
    a(f"{MF} {V(Ot[1], 4)}, {V(VMR + 4, 4)}, {V(B3, 4)}, {V(Ot[1], 4)}")
    a(f"v_mul_f32 {V(PMm)}, 0x3e800000, {V(PMm)}")
    a(f"v_add_f32 {su}, {su}, {V(PMm)}")
    a(f"{MF} {V(Ot[2], 4)}, {V(VMR + 8, 4)}, {V(B3, 4)}, {V(Ot[2], 4)}")
    a(f"{MF} {V(Ot[3], 4)}, {V(VMR + 12, 4)}, {V(B3, 4)}, {V(Ot[3], 4)}")
    g.xlane_reduce(a, "v_add_f32", su, tm, (8, 16, 32))
    a(f"v_rcp_f32 {su}, {su}")
    for r in range(0, 32, 2): a(f"v_mov_b64 {V(OUT + r, 2)}, 0")
    OAq = KST
    for ks in range(2):
        for pp in range(2):
            o = Ot[2*ks + pp]
            for r in range(4): a(f"v_mul_f32 {V(o + r)}, {V(o + r)}, {su}")
            a(f"v_cvt_pk_bf16_f32 {V(OAq + 4*ks + 2*pp)}, {V(o)}, {V(o + 1)}")
            a(f"v_cvt_pk_bf16_f32 {V(OAq + 4*ks + 2*pp + 1)}, {V(o + 2)}, {V(o + 3)}")
    stamp(5)
    G = KST + 8
    def wo(ks, q, cb):
        a(f"{SM} {V(OUT + 8*q + 4*cb, 4)}, {V(OAq + 4*ks, 4)}, {A(128 + 64*ks + 16*q + 8*cb, 8)}, {vIDX}")
    def fin(st):
        steps = []
        for cb in range(2):
            for r in range(4):
                x, y = OUT + 16*st + 4*cb + r, OUT + 16*st + 8 + 4*cb + r
                steps.append(f"v_permlane32_swap_b32 {V(x)}, {V(y)}")
        for cb in range(2):
            for r in range(4):
                x, y = OUT + 16*st + 4*cb + r, OUT + 16*st + 8 + 4*cb + r
                steps.append(f"v_add_f32 {V(x)}, {V(x)}, {V(y)}")
        for r in range(4):
            steps.append(f"v_cvt_pk_bf16_f32 {V(G + 4*st + r)}, {V(OUT + 16*st + r)}, {V(OUT + 16*st + 4 + r)}")
        steps.append(f"v_and_or_b32 {V(G + 4*st)}, {V(G + 4*st)}, -2, {sTAG}")
        return steps
    for q in range(2):
        for cb in range(2): wo(0, q, cb)
    for q in range(2):
        for cb in range(2): wo(1, q, cb)
    f0 = fin(0)
    rest = [(ks, q, cb) for ks in range(2) for q in (2, 3) for cb in range(2)]
    for n, (ks, q, cb) in enumerate(rest):
        wo(ks, q, cb)
        if n >= 1:
            for _ in range(3):
                if f0: a(f0.pop(0))
    while f0: a(f0.pop(0))
    a(f"buffer_store_dwordx4 {V(G, 4)}, {vINST}, {sWS}, 0 offen")
    for x in fin(1): a(x)
    a(f"s_mov_b32 {sT0}, 32768")
    a(f"buffer_store_dwordx4 {V(G + 4, 4)}, {vINST}, {sWS}, {sT0} offen")
    stamp(6)
    pre_step()
    a(f"s_add_u32 {sS}, {sS}, 1")
    a(f"s_add_u32 {sKM}, {sKM}, 8192")
    a(f"s_xor_b32 {sVXB}, {sVXB}, 8192")
    a(f"s_mov_b32 {sT2}, {sRC}")
    a(f"s_mov_b32 {sRC}, {sRN}")
    a(f"s_add_u32 {sRN}, {sRN}, 8192")
    a(f"s_cmp_eq_u32 {sRN}, {g.RING + 3*8192}")
    a(f"s_cselect_b32 {sRN}, {g.RING}, {sRN}")
    a(f"s_cmp_lg_u32 {sWV}, 0")
    a("s_cbranch_scc1 L_r_endstep")
    if opts.get("da"): a(f"s_sleep {opts['da']}")
    a(f"s_add_u32 {sT1}, {sINB}, 4096")
    a.label("L_r_pa")
    for n in range(8):
        a(f"buffer_load_dwordx4 {V(MEM + 4*n, 4)}, {vL16}, {sWS}, {sINB if n < 4 else sT1} offen offset:{1024*(n & 3)} sc1")
    a(f"s_sub_u32 {sBUD}, {sBUD}, 1")
    a("s_cbranch_scc1 L_exit")
    RD = SP
    tA, tO = vVXR, vKMST
    tA = vVXR
    for n in range(8):
        a(f"s_waitcnt vmcnt({7 - n})")
        a(f"{MF} {V(RD, 4)}, {V(MEM + 4*n, 4)}, {V(SELR, 4)}, {V(RD, 4) if n else 0}")
        if n == 0: a(f"v_xor_b32 {tA}, {sTAG}, {V(MEM)}")
        else: a(f"v_bitop3_b32 {tA}, {tA}, {V(MEM + 4*n)}, {sTAG} bitop3:0xf6")
    a(f"v_and_b32 {tA}, 1, {tA}")
    a(f"v_cmp_ne_u32 vcc, 0, {tA}")
    a("s_cbranch_vccnz L_r_pa")
    stamp(7)
    a(f"v_cvt_pk_bf16_f32 {V(RD)}, {V(RD)}, {V(RD + 1)}")
    a(f"v_cvt_pk_bf16_f32 {V(RD + 1)}, {V(RD + 2)}, {V(RD + 3)}")
    a(f"v_min_u32 {V(RD)}, 0xfffffffe, {V(RD)}")
    a(f"v_mov_b64 {V(RD + 2, 2)}, -1")
    a(f"s_mov_b64 exec, {sEXLO}")
    a(f"buffer_store_dwordx2 {V(RD, 2)}, {vPUB}, {sWS}, {sRC} offen")
    a(f"buffer_store_dwordx2 {V(RD + 2, 2)}, {vPUB}, {sWS}, {sT2} offen")
    if opts.get("dumpmem"):
        a(f"s_lshl_b32 {sT0}, {sS}, 13")
        a(f"s_add_u32 {sT0}, {sT0}, {g.DBGDUMP}")
        a(f"buffer_store_dwordx2 {V(RD, 2)}, {vPUB}, {sWS}, {sT0} offen")
    a("s_mov_b64 exec, -1")
    a.label("L_r_endstep")
    a(f"s_xor_b32 {sTAG}, {sTAG}, 1")
    if prof:
        a("s_waitcnt lgkmcnt(0)")
        a(f"s_lshl_b32 {sT0}, {sH}, 2")
        a(f"s_add_u32 {sT0}, {sT0}, {sWV}")
        a(f"s_lshl_b32 {sT0}, {sT0}, 6")
        a(f"s_add_u32 {sT0}, {sT0}, {sS}")
        a(f"s_lshl_b32 {sT0}, {sT0}, 5")
        a(f"s_add_u32 {sT0}, {sT0}, {g.DBGDUMP + 0x100000}")
        for k in range(8): a(f"v_writelane_b32 {vVXR}, s{48 + 2*k}, {k}")
        a(f"v_lshlrev_b32 {V(MEM)}, 2, {vL}")
        a("s_mov_b64 exec, 0xff")
        a(f"buffer_store_dword {vVXR}, {V(MEM)}, {sWS}, {sT0} offen")
        a("s_mov_b64 exec, -1")
    a("s_branch L_r_b3")
    for pos in range(1, 8):
        a.label(f"L_r_retry{pos}")
        a("s_nop 7")
        for p in range(pos, min(7, pos + WIN - 1) + 1): mload(p)
        a(f"s_sub_u32 {sBUD}, {sBUD}, 1")
        a("s_cbranch_scc1 L_exit")
        a(f"s_waitcnt vmcnt({inflight_after(pos)})")
        check(pos)
        a(f"s_cbranch_vccnz L_r_retry{pos}")
        a(f"s_branch L_r_ok{pos}")
    a.label("L_r_last")
    a("s_waitcnt vmcnt(0)")
    a("s_barrier")
    a(f"s_cmp_lg_u32 {sWV}, 1")
    a("s_cbranch_scc1 L_exit")
    a(f"s_lshl_b32 {sT0}, {sH}, 7")
    a(f"s_add_u32 {sT0}, {sT0}, {g.KMFLAG}")
    a(f"v_mov_b32 {V(SP + 1)}, {sT0}")
    a(f"v_mov_b32 {V(SP + 2)}, 64")
    g.set_flag(a, V(SP + 1), V(SP + 2))
    a("s_waitcnt vmcnt(0)")
```

```python
from asmlib import *

def gen_wa(a, g, opts):
    MF = g.MF
    sWV, sWS = g.sWV, g.sWS
    sJ, sR = "s28", "s29"
    sLB, sT0, sT1, sT2 = "s33", "s34", "s35", "s36"
    sSEG, sBUFC, sBUFN, sPQ = "s37", "s38", "s39", "s40"
    sN, sL2E, sEPS = "s41", "s42", "s43"
    vL = "v0"
    vOFF, vN0, vN1, vI, vL16 = "v1", "v2", "v3", "v4", "v5"
    vRD = ["v6", "v7", "v8", "v9"]
    vRC = ["v10", "v11", "v12", "v13"]
    vT0, vT1, vT2 = "v14", "v15", "v16"
    a(f"v_lshlrev_b32 {vL16}, 4, {vL}")
    a(f"s_cmp_lg_u32 {sWV}, 0")
    a("s_cbranch_scc1 L_wa_z")
    for r in range(4): a(f"v_mov_b32 {V(20 + r)}, 0")
    a(f"s_lshl_b32 {sT0}, {g.sTK}, 10")
    a(f"buffer_store_dwordx4 v[20:23], {vL16}, {sWS}, {sT0} offen sc1")
    a(f"v_mov_b32 v24, {g.D_ZDONE}")
    a(f"v_mov_b32 v25, 1")
    a("s_waitcnt vmcnt(0)")
    a("s_mov_b64 exec, 1")
    a(f"buffer_atomic_add v25, v24, {g.sDBG}, 0 offen")
    a("s_mov_b64 exec, -1")
    a.label("L_wa_z")
    if opts.get("no_wa"):
        a("s_waitcnt vmcnt(0)")
        return
    a(f"s_and_b32 {sJ}, {g.sTK}, 3")
    a(f"s_lshr_b32 {sR}, {g.sTK}, 2")
    a(f"s_lshl_b32 {sLB}, {sWV}, 15")
    g.srd(a, 16, g.P_AX, 2048 * 1024)
    a(f"s_lshl_b32 {sSEG}, {sR}, 3")
    a(f"s_mov_b32 {sBUFC}, {131072}")
    a(f"s_mov_b32 {sBUFN}, 0")
    a(f"s_lshl_b32 {sT2}, {sSEG}, 15")
    g.xtile_dma(a, vL, [vT0, vT1], sT2, sBUFC, sT0, sT1)
    a(f"s_lshl_b32 {sT0}, {sJ}, 8")
    a(f"s_lshl_b32 {sT1}, {sWV}, 6")
    a(f"s_add_u32 {sT2}, {sT0}, {sT1}")
    g.loader_voff(a, vOFF, vL, "dense", 3072, True, sT2, vT0, vT1, sT0)
    g.loader_traddr(a, vN0, vN1, vI, vL, sLB, vT0, vT1)
    g.xtile_setup(a, None, vRD, vL, vT0, vT1)
    stages = []
    for colb, dst in ((1024, ("a", 0)), (2048, ("a", 128)), (0, ("v", 128))):
        for s in range(8):
            stages.append(g.Stage(g.P_AWQKV, 512 * 3072, vOFF, "dense", 3072, 64 * s, colb, True, (dst[0], dst[1] + 16 * s)))
    g.run_loader(a, stages, sLB, vN0, vN1, vI, sT0)
    a(f"s_lshl_b32 {sPQ}, {g.sTK}, 16")
    a(f"s_lshl_b32 {sT0}, {sWV}, 11")
    a(f"s_add_u32 {sPQ}, {sPQ}, {sT0}")
    a(f"s_add_u32 {sPQ}, {sPQ}, {g.PQ}")
    a(f"s_mov_b32 {sL2E}, {g.f2u(g.LOG2E)}")
    a(f"s_mov_b32 {sEPS}, {g.f2u(1e-6)}")
    KV, ONES = 112, 20
    for r in range(16): a(f"v_mov_b32 {V(KV + r)}, 0")
    for r in range(4): a(f"v_mov_b32 {V(ONES + r)}, 0x3f803f80")
    a(f"s_mov_b32 {sN}, 0")
    a.label("L_wa_p1")
    a("s_waitcnt vmcnt(0)")
    a("s_barrier")
    a(f"s_cmp_ge_u32 {sN}, 7")
    a("s_cbranch_scc1 L_wa_nopf")
    a(f"s_add_u32 {sT2}, {sSEG}, 1")
    a(f"s_lshl_b32 {sT2}, {sT2}, 15")
    g.xtile_dma(a, vL, [vT0, vT1], sT2, sBUFN, sT0, sT1)
    a.label("L_wa_nopf")
    for q in range(4):
        a(f"v_add_u32 {vRC[q]}, {sBUFC}, {vRD[q]}")
    g.qkv_gemm(a, vRC, None, False)
    for base in (64, 80):
        for r0 in range(0, 16, 8):
            for r in range(8):
                a(f"v_mul_f32 {V(24 + r)}, {sL2E}, {V(base + r0 + r)}")
            for r in range(8):
                a(f"v_min_f32 {V(24 + r)}, 0, {V(24 + r)}")
            for r in range(8):
                a(f"v_exp_f32 {V(24 + r)}, {V(24 + r)}")
            for r in range(8):
                a(f"v_max_f32 {V(base + r0 + r)}, 0, {V(base + r0 + r)}")
            for r in range(8):
                a(f"v_add_f32 {V(24 + r)}, {sEPS}, {V(24 + r)}")
            for r in range(8):
                a(f"v_add_f32 {V(base + r0 + r)}, {V(base + r0 + r)}, {V(24 + r)}")
    a(f"s_lshl_b32 {sT0}, {sN}, 13")
    a(f"s_add_u32 {sT0}, {sT0}, {sPQ}")
    for tt in range(2):
        g.pack8(a, 32 + 4*tt, 64 + 8*tt)
        a(f"buffer_store_dwordx4 {V(32 + 4*tt, 4)}, {vL16}, {sWS}, {sT0} offen offset:{1024*tt}")
    for t in range(2):
        g.pack8(a, 40 + 4*t, 80 + 8*t)
        g.pack8(a, 48 + 4*t, 96 + 8*t)
    for t in range(2):
        a(f"{MF} {V(KV + 4*t, 4)}, {V(40 + 4*t, 4)}, {V(48 + 4*t, 4)}, {V(KV + 4*t, 4)}")
        a(f"{MF} {V(KV + 8 + 4*t, 4)}, {V(40 + 4*t, 4)}, {V(ONES, 4)}, {V(KV + 8 + 4*t, 4)}")
    a(f"s_add_u32 {sSEG}, {sSEG}, 1")
    a(f"s_add_u32 {sN}, {sN}, 1")
    a(f"s_mov_b32 {sT0}, {sBUFC}")
    a(f"s_mov_b32 {sBUFC}, {sBUFN}")
    a(f"s_mov_b32 {sBUFN}, {sT0}")
    a(f"s_cmp_lt_u32 {sN}, 8")
    a("s_cbranch_scc1 L_wa_p1")
    a("s_nop 7")
    a(f"s_lshl_b32 {sT0}, {sJ}, 3")
    a(f"s_add_u32 {sT0}, {sT0}, {sR}")
    a(f"s_lshl_b32 {sT0}, {sT0}, 14")
    a(f"s_lshl_b32 {sT1}, {sWV}, 12")
    a(f"s_add_u32 {sT0}, {sT0}, {sT1}")
    a(f"s_add_u32 {sT0}, {sT0}, {g.KVP}")
    for q in range(4):
        a(f"buffer_store_dwordx4 {V(KV + 4*q, 4)}, {vL16}, {sWS}, {sT0} offen offset:{1024*q} sc1")
    g.wait_zdone(a, vT0, vT1)
    a("s_barrier")
    a(f"s_cmp_lg_u32 {sWV}, 0")
    a("s_cbranch_scc1 L_wa_f1")
    a(f"s_lshl_b32 {sT0}, {sJ}, 7")
    a(f"s_lshl_b32 {sT1}, {sR}, 2")
    a(f"s_add_u32 {sT0}, {sT0}, {sT1}")
    a(f"s_add_u32 {sT0}, {sT0}, {g.AFLAG}")
    a(f"v_mov_b32 {vT0}, {sT0}")
    a(f"v_mov_b32 {vT1}, 1")
    g.set_flag(a, vT0, vT1)
    a.label("L_wa_f1")
    a(f"s_lshl_b32 {sT0}, {sJ}, 8")
    a(f"s_lshl_b32 {sT1}, {sWV}, 6")
    a(f"s_add_u32 {sT2}, {sT0}, {sT1}")
    g.loader_voff(a, vOFF, vL, "ident", 1024, False, sT2, vT0, vT1, sT0)
    stages = [g.Stage(g.P_AWO, 512 * 1024, vOFF, "ident", 1024, 64 * s, 0, False, ("a", 16 * s)) for s in range(8)]
    g.run_loader(a, stages, sLB, vN0, vN1, vI, sT0)
    a(f"v_and_b32 {vT0}, 7, {vL}")
    a(f"v_lshlrev_b32 {vT0}, 2, {vT0}")
    a(f"s_lshl_b32 {sT0}, {sJ}, 7")
    a(f"s_add_u32 {sT0}, {sT0}, {g.AFLAG}")
    g.poll(a, sWS, vT0, vT1, "v_cmp_ne_u32", 1, soff=sT0, sleep=4)
    a(f"s_lshl_b32 {sT0}, {sJ}, 17")
    a(f"s_lshl_b32 {sT1}, {sWV}, 12")
    a(f"s_add_u32 {sT0}, {sT0}, {sT1}")
    a(f"s_add_u32 {sT0}, {sT0}, {g.KVP}")
    for r in range(8):
        if r: a(f"s_add_u32 {sT0}, {sT0}, 16384")
        for q in range(4):
            a(f"buffer_load_dwordx4 {V(128 + 16*r + 4*q, 4)}, {vL16}, {sWS}, {sT0} offen offset:{1024*q} sc1")
    a("s_waitcnt vmcnt(0)")
    for r in range(1, 8):
        for q in range(16):
            a(f"v_add_f32 {V(128 + q)}, {V(128 + q)}, {V(128 + 16*r + q)}")
    KO, ZO = 24, 30
    for o, src in ((KO, 128), (ZO, 136)):
        a(f"v_cvt_pk_bf16_f32 {V(o)}, {V(src)}, {V(src + 1)}")
        a(f"v_cvt_pk_bf16_f32 {V(o + 1)}, {V(src + 2)}, {V(src + 3)}")
        a(f"v_mov_b32 {V(o + 2)}, 0")
        a(f"v_mov_b32 {V(o + 3)}, 0")
        a(f"v_cvt_pk_bf16_f32 {V(o + 4)}, {V(src + 4)}, {V(src + 5)}")
        a(f"v_cvt_pk_bf16_f32 {V(o + 5)}, {V(src + 6)}, {V(src + 7)}")
    a(f"s_mov_b32 {sT0}, {sPQ}")
    for n in range(8):
        if n: a(f"s_add_u32 {sT0}, {sT0}, 8192")
        for tt in range(2):
            a(f"buffer_load_dwordx4 {V(128 + 8*n + 4*tt, 4)}, {vL16}, {sWS}, {sT0} offen offset:{1024*tt} sc1")
    a(f"s_lshl_b32 {sT0}, {sR}, 18")
    a(f"s_lshl_b32 {sT1}, {sJ}, 2")
    a(f"s_add_u32 {sT1}, {sT1}, {sWV}")
    a(f"s_lshl_b32 {sT1}, {sT1}, 10")
    a(f"s_add_u32 {sT0}, {sT0}, {sT1}")
    a(f"s_add_u32 {sT0}, {sT0}, {g.OA}")
    a("s_waitcnt vmcnt(0)")
    for it in range(16):
        B = V(128 + 4*it, 4)
        N_, D_ = 40 + 16*(it & 1), 48 + 16*(it & 1)
        for t in range(2):
            a(f"{MF} {V(N_ + 4*t, 4)}, {V(KO + 2*t, 4)}, {B}, 0")
            a(f"{MF} {V(D_ + 4*t, 4)}, {V(ZO + 2*t, 4)}, {B}, 0")
        for t in range(2):
            a(f"v_add_f32 {V(D_ + 4*t)}, {sEPS}, {V(D_ + 4*t)}")
            a(f"v_rcp_f32 {V(D_ + 4*t)}, {V(D_ + 4*t)}")
        for t in range(2):
            for r in range(4):
                a(f"v_mul_f32 {V(N_ + 4*t + r)}, {V(N_ + 4*t + r)}, {V(D_ + 4*t)}")
        P_ = 72 + 4*(it & 3)
        g.pack8(a, P_, N_)
        if it: a(f"s_add_u32 {sT0}, {sT0}, 16384")
        a(f"buffer_store_dwordx4 {V(P_, 4)}, {vL16}, {sWS}, {sT0} offen sc1")
    a("s_waitcnt vmcnt(0)")
    a("s_barrier")
    a(f"s_cmp_lg_u32 {sWV}, 0")
    a("s_cbranch_scc1 L_wa_f2")
    a(f"s_lshl_b32 {sT0}, {sR}, 7")
    a(f"s_lshl_b32 {sT1}, {sJ}, 2")
    a(f"s_add_u32 {sT0}, {sT0}, {sT1}")
    a(f"s_add_u32 {sT0}, {sT0}, {g.OAFLAG}")
    a(f"v_mov_b32 {vT0}, {sT0}")
    a(f"v_mov_b32 {vT1}, 1")
    g.set_flag(a, vT0, vT1)
    a.label("L_wa_f2")
    a(f"v_and_b32 {vT0}, 3, {vL}")
    a(f"v_lshlrev_b32 {vT0}, 2, {vT0}")
    a(f"s_lshl_b32 {sT0}, {sR}, 7")
    a(f"s_add_u32 {sT0}, {sT0}, {g.OAFLAG}")
    g.poll(a, sWS, vT0, vT1, "v_cmp_ne_u32", 1, soff=sT0, sleep=4)
    vOUT = "v17"
    a(f"v_and_b32 {vT0}, 15, {vL}")
    a(f"v_lshrrev_b32 {vT1}, 4, {vL}")
    a(f"v_lshlrev_b32 {vOUT}, 11, {vT0}")
    a(f"v_lshl_add_u32 {vOUT}, {vT1}, 4, {vOUT}")
    a(f"s_lshl_b32 {sT0}, {sJ}, 8")
    a(f"s_lshl_b32 {sT1}, {sWV}, 6")
    a(f"s_add_u32 {sT0}, {sT0}, {sT1}")
    a(f"v_add_u32 {vOUT}, {sT0}, {vOUT}")
    sSRC, sDST = "s44", "s45"
    a(f"s_lshl_b32 {sSRC}, {sR}, 18")
    a(f"s_add_u32 {sSRC}, {sSRC}, {g.OA}")
    a(f"s_lshl_b32 {sDST}, {sR}, 19")
    a(f"s_mov_b32 {sN}, 0")
    a.label("L_wa_p3")
    for k in range(32):
        if k and k % 4 == 0: a(f"s_add_u32 {sSRC}, {sSRC}, 4096")
        a(f"buffer_load_dwordx4 {V(128 + 4*k, 4)}, {vL16}, {sWS}, {sSRC} offen offset:{1024*(k & 3)} sc1")
    a(f"s_add_u32 {sSRC}, {sSRC}, 4096")
    for k in range(32):
        a(f"s_waitcnt vmcnt({31 - k})")
        tt, kk = k >> 4, k & 15
        for cb in range(2):
            d = V(40 + 8*tt + 4*cb, 4)
            a(f"{MF} {d}, {g.wfrag('a', 0, kk, cb)}, {V(128 + 4*k, 4)}, {d if kk else 0}")
    for tt in range(2):
        g.pack8(a, 56 + 4*tt, 40 + 8*tt)
        a(f"buffer_store_dwordx4 {V(56 + 4*tt, 4)}, {vOUT}, {g.sOUT}, {sDST} offen")
        a(f"s_add_u32 {sDST}, {sDST}, 32768")
    a(f"s_add_u32 {sN}, {sN}, 1")
    a(f"s_cmp_lt_u32 {sN}, 8")
    a("s_cbranch_scc1 L_wa_p3")
    a("s_waitcnt vmcnt(0)")
```

```python
from asmlib import *

def gen_wb(a, g, opts):
    if opts.get("no_wb"):
        return
    MF = g.MF
    sWV, sWS = g.sWV, g.sWS
    sI, sH, sR, sTEAM, sCG = "s28", "s29", "s30", "s31", "s32"
    sLB, sT0, sT1, sT2 = "s33", "s34", "s35", "s36"
    sSEG, sBUFC, sBUFN, sQKV = "s37", "s38", "s39", "s40"
    sN, sSO, sPAR = "s41", "s42", "s43"
    vL = "v0"
    vOFF, vN0, vN1, vI, vL16 = "v1", "v2", "v3", "v4", "v5"
    vRD = ["v6", "v7", "v8", "v9"]
    vRC = ["v10", "v11", "v12", "v13"]
    vT0, vT1, vT2 = "v14", "v15", "v16"
    a(f"s_sub_u32 {sI}, {g.sXCC}, 1")
    a(f"s_lshl_b32 {sI}, {sI}, 5")
    a(f"s_add_u32 {sI}, {sI}, {g.sTK}")
    a(f"s_mul_i32 {sH}, {sI}, 43")
    a(f"s_lshr_b32 {sH}, {sH}, 8")
    assert all((i * 43) >> 8 == i // 6 for i in range(128))
    a.lines.pop(); a.lines.pop()
    assert all((i * 171) >> 10 == i // 6 for i in range(192))
    a(f"s_mul_i32 {sH}, {sI}, 171")
    a(f"s_lshr_b32 {sH}, {sH}, 10")
    a(f"s_mul_i32 {sT0}, {sH}, 6")
    a(f"s_sub_u32 {sR}, {sI}, {sT0}")
    a(f"s_lshr_b32 {sTEAM}, {sI}, 4")
    a(f"s_and_b32 {sCG}, {sI}, 15")
    a(f"s_lshl_b32 {sLB}, {sWV}, 15")
    g.srd(a, 16, g.P_BX, 2048 * 1024)
    a(f"v_lshlrev_b32 {vL16}, 4, {vL}")
    a(f"s_mov_b32 {sSEG}, {sR}")
    a(f"s_mov_b32 {sBUFC}, {131072}")
    a(f"s_mov_b32 {sBUFN}, 0")
    a(f"s_lshl_b32 {sT2}, {sSEG}, 15")
    g.xtile_dma(a, vL, [vT0, vT1], sT2, sBUFC, sT0, sT1)
    a(f"s_lshl_b32 {sT0}, {sH}, 8")
    a(f"s_lshl_b32 {sT1}, {sWV}, 6")
    a(f"s_add_u32 {sT2}, {sT0}, {sT1}")
    g.loader_voff(a, vOFF, vL, "dense", 8192, True, sT2, vT0, vT1, sT0)
    g.loader_traddr(a, vN0, vN1, vI, vL, sLB, vT0, vT1)
    g.xtile_setup(a, None, vRD, vL, vT0, vT1)
    WB = 512 * 8192
    stages = []
    for ptr, dst in ((g.P_WK, ("a", 0)), (g.P_WV, ("a", 128)), (g.P_WQ, ("v", 128))):
        for s in range(8):
            stages.append(g.Stage(ptr, WB, vOFF, "dense", 8192, 64 * s, 0, True, (dst[0], dst[1] + 16 * s)))
    g.run_loader(a, stages, sLB, vN0, vN1, vI, sT0, extra_before=8)
    g.wait_zdone(a, vT0, vT1)
    a(f"s_mul_i32 {sQKV}, {sH}, {64 * 24576}")
    a(f"s_add_u32 {sQKV}, {sQKV}, {g.QKV}")
    a(f"s_lshl_b32 {sT0}, {sWV}, 11")
    a(f"s_add_u32 {sQKV}, {sQKV}, {sT0}")
    a.label("L_wb_p1")
    a("s_waitcnt vmcnt(0)")
    a("s_barrier")
    a(f"s_cmp_lt_u32 {sSEG}, 6")
    a("s_cbranch_scc1 L_wb_noflag")
    a(f"s_cmp_lg_u32 {sWV}, 0")
    a("s_cbranch_scc1 L_wb_noflag")
    a(f"s_lshl_b32 {sT0}, {sH}, 6")
    a(f"s_add_u32 {sT0}, {sT0}, {sSEG}")
    a(f"s_sub_u32 {sT0}, {sT0}, 6")
    a(f"s_lshl_b32 {sT0}, {sT0}, 2")
    a(f"v_mov_b32 {vT0}, {sT0}")
    a(f"v_mov_b32 {vT1}, 1")
    g.set_flag(a, vT0, vT1, off=g.KVFLAG)
    a.label("L_wb_noflag")
    a(f"s_cmp_ge_u32 {sSEG}, 64")
    a("s_cbranch_scc1 L_wb_p1_done")
    a(f"s_add_u32 {sT2}, {sSEG}, 6")
    a(f"s_cmp_ge_u32 {sT2}, 64")
    a("s_cbranch_scc1 L_wb_nopf")
    a(f"s_lshl_b32 {sT2}, {sT2}, 15")
    g.xtile_dma(a, vL, [vT0, vT1], sT2, sBUFN, sT0, sT1)
    a.label("L_wb_nopf")
    for q in range(4):
        a(f"v_add_u32 {vRC[q]}, {sBUFC}, {vRD[q]}")
    g.qkv_gemm(a, vRC, None, True)
    a(f"s_mul_i32 {sT0}, {sSEG}, 24576")
    a(f"s_add_u32 {sT0}, {sT0}, {sQKV}")
    for j, (acc, off) in enumerate(((80, 8192), (96, 16384), (64, 0))):
        a(f"s_add_u32 {sT1}, {sT0}, {off}")
        for x in range(2):
            d = 32 + 8 * (j % 2) + 4 * x
            g.pack8(a, d, acc + 8 * x)
            a(f"buffer_store_dwordx4 {V(d, 4)}, {vL16}, {sWS}, {sT1} offen offset:{1024*x} sc1")
    a(f"s_add_u32 {sSEG}, {sSEG}, 6")
    a(f"s_mov_b32 {sT0}, {sBUFC}")
    a(f"s_mov_b32 {sBUFC}, {sBUFN}")
    a(f"s_mov_b32 {sBUFN}, {sT0}")
    a("s_branch L_wb_p1")
    a.label("L_wb_p1_done")
    if opts.get("wb_p1_only"):
        return
    a(f"s_lshl_b32 {sT0}, {sWV}, 20")
    a(f"s_lshl_b32 {sT1}, {sCG}, 6")
    a(f"s_add_u32 {sT2}, {sT0}, {sT1}")
    g.loader_voff(a, vOFF, vL, "ident", 1024, False, sT2, vT0, vT1, sT0)
    stages = [g.Stage(g.P_WO, 4096 * 1024, vOFF, "ident", 1024, 64 * s, 0, False, ("a", 16 * s)) for s in range(16)]
    g.run_loader(a, stages, sLB, vN0, vN1, vI, sT0, extra_before=1)
    vBIAS = 112
    vKMOFF, vOUTOFF, vFL8, vZ = "v17", "v18", "v19", "v20"
    sQT, sFH = "s44", "s45"
    a(f"s_and_b32 {sQT}, {sWV}, 1")
    a(f"s_lshr_b32 {sFH}, {sWV}, 1")
    a(f"v_and_b32 {vT0}, 15, {vL}")
    a(f"v_lshrrev_b32 {vT1}, 4, {vL}")
    a(f"s_lshl_b32 {sT0}, {sQT}, 4")
    a(f"v_add_u32 {vT2}, {sT0}, {vT0}")
    a(f"v_lshlrev_b32 v21, 2, {vT1}")
    a(f"v_sub_u32 {vT2}, {vT2}, v21")
    a(f"v_mov_b32 v21, 0")
    a(f"v_mov_b32 v22, 0xf149f2ca")
    for t in range(2):
        for r in range(4):
            a(f"v_cmp_le_i32 vcc, {16*t + r}, {vT2}")
            a(f"v_cndmask_b32 {V(vBIAS + 4*t + r)}, v22, v21, vcc")
    a(f"v_and_b32 v21, 7, {vT0}")
    a(f"v_lshl_add_u32 v21, {vT1}, 3, v21")
    a(f"v_lshlrev_b32 {vKMOFF}, 4, v21")
    a(f"v_lshlrev_b32 {vOUTOFF}, 11, {vT0}")
    a(f"v_lshl_add_u32 {vOUTOFF}, {vT1}, 4, {vOUTOFF}")
    a(f"s_lshl_b32 {sT0}, {sCG}, 6")
    a(f"s_add_u32 {sT0}, {sT0}, 1024")
    a(f"v_add_u32 {vOUTOFF}, {sT0}, {vOUTOFF}")
    a(f"v_and_b32 {vFL8}, 7, {vL}")
    a(f"s_lshl_b32 {sT0}, {sWV}, 3")
    a(f"v_add_u32 {vFL8}, {sT0}, {vFL8}")
    a(f"v_lshlrev_b32 {vFL8}, 2, {vFL8}")
    PM = 120
    for k in (0, 1, 4, 5): a(f"v_mov_b32 {V(PM + k)}, 0")
    a(f"s_mov_b32 {sN}, 0")
    a(f"s_mov_b32 {sPAR}, 0")
    sORD = "s46"
    a(f"s_lshr_b32 {sT0}, {sTEAM}, 1")
    a(f"s_cmp_le_u32 {sR}, {sT0}")
    a(f"s_cselect_b32 {sORD}, 0, 1")
    a("s_barrier")
    a.label("L_wb_round")
    a(f"s_cmp_eq_u32 {sORD}, 0")
    a("s_cbranch_scc0 L_wb_out")
    a.label("L_wb_att")
    a(f"s_add_u32 {sSEG}, {sN}, {sR}")
    a(f"s_cmp_ge_u32 {sSEG}, 64")
    a("s_cbranch_scc1 L_wb_att_done")
    Q, KX, VX, KM, VM = 128, 144, 176, 192, 208
    a(f"s_mul_i32 {sT0}, {sH}, {64 * 24576}")
    a(f"s_mul_i32 {sT1}, {sSEG}, 24576")
    a(f"s_add_u32 {sT0}, {sT0}, {sT1}")
    a(f"s_add_u32 {sT0}, {sT0}, {g.QKV}")
    a(f"s_lshl_b32 {sT1}, {sQT}, 10")
    a(f"s_add_u32 {sT1}, {sT1}, {sT0}")
    for k in range(4):
        if k == 2: a(f"s_add_u32 {sT1}, {sT1}, 4096")
        a(f"buffer_load_dwordx4 {V(Q + 4*k, 4)}, {vL16}, {sWS}, {sT1} offen offset:{2048*(k & 1)} sc1")
    a(f"s_add_u32 {sT1}, {sT0}, 8192")
    for k in range(8):
        if k == 4: a(f"s_add_u32 {sT1}, {sT1}, 4096")
        a(f"buffer_load_dwordx4 {V(KX + 4*k, 4)}, {vL16}, {sWS}, {sT1} offen offset:{1024*(k & 3)} sc1")
    a(f"s_lshl_b32 {sT1}, {sFH}, 12")
    a(f"s_add_u32 {sT1}, {sT1}, {sT0}")
    a(f"s_add_u32 {sT1}, {sT1}, 16384")
    for k in range(4):
        a(f"buffer_load_dwordx4 {V(VX + 4*k, 4)}, {vL16}, {sWS}, {sT1} offen offset:{1024*k} sc1")
    SX, SMm = 64, 72
    a("s_waitcnt vmcnt(0)")
    for k in range(4):
        for t in range(2):
            d = V(SX + 4*t, 4)
            a(f"{MF} {d}, {V(KX + 8*k + 4*t, 4)}, {V(Q + 4*k, 4)}, {d if k else V(vBIAS + 4*t, 4)}")
    a(f"s_lshl_b32 {sT1}, {sH}, 7")
    a(f"s_add_u32 {sT1}, {sT1}, {g.KMFLAG}")
    a(f"v_mov_b32 {vT0}, {sT1}")
    g.poll(a, sWS, vT0, vT1, "v_cmp_ge_u32", sSEG, sleep=4)
    a(f"s_lshl_b32 {sT0}, {sH}, 6")
    a(f"s_add_u32 {sT0}, {sT0}, {sSEG}")
    a(f"s_lshl_b32 {sT0}, {sT0}, 13")
    a(f"s_add_u32 {sT0}, {sT0}, {g.KMVM}")
    for k in range(4):
        a(f"buffer_load_dwordx4 {V(KM + 4*k, 4)}, {vKMOFF}, {sWS}, {sT0} offen offset:{512*k} sc1")
    a(f"s_lshl_b32 {sT1}, {sFH}, 11")
    a(f"s_add_u32 {sT0}, {sT0}, {sT1}")
    a(f"s_add_u32 {sT0}, {sT0}, 4096")
    for k in range(2):
        a(f"buffer_load_dwordx4 {V(VM + 4*k, 4)}, {vL16}, {sWS}, {sT0} offen offset:{1024*k} sc1")
    a("s_waitcnt vmcnt(2)")
    for k in range(4):
        d = V(SMm, 4)
        a(f"{MF} {d}, {V(KM + 4*k, 4)}, {V(Q + 4*k, 4)}, {d if k else 0}")
    m, t_, su, mc = "v76", "v77", "v78", "v79"
    a(f"v_max3_f32 {m}, v64, v65, v66")
    a(f"v_max3_f32 {m}, {m}, v67, v68")
    a(f"v_max3_f32 {m}, {m}, v69, v70")
    a(f"v_max3_f32 {m}, {m}, v71, v72")
    a(f"v_max3_f32 {m}, {m}, v73, v74")
    a(f"v_max_f32 {m}, {m}, v75")
    g.xlane_reduce(a, "v_max_f32", m, t_, (16, 32))
    a(f"s_mov_b32 {sT1}, {g.SCALE_B}")
    a(f"v_mul_f32 {mc}, {sT1}, {m}")
    for r in range(12):
        a(f"v_fma_f32 {V(64 + r)}, {V(64 + r)}, {sT1}, -{mc}")
    for r in range(12):
        a(f"v_exp_f32 {V(64 + r)}, {V(64 + r)}")
    PX = 80
    g.pack8(a, PX, 64)
    a(f"v_cvt_pk_bf16_f32 {V(PM + 2)}, v72, v73")
    a(f"v_cvt_pk_bf16_f32 {V(PM + 3)}, v74, v75")
    O = 84
    a("s_waitcnt vmcnt(0)")
    for t in range(4):
        a(f"{MF} {V(O + 4*t, 4)}, {V(VX + 4*t, 4)}, {V(PX, 4)}, 0")
    for t in range(4):
        pm = V(PM + 2, 4) if (t & 1) == 0 else V(PM, 4)
        a(f"{MF} {V(O + 4*t, 4)}, {V(VM + 4*(t >> 1), 4)}, {pm}, {V(O + 4*t, 4)}")
    a(f"v_add_f32 {su}, v72, v73")
    a(f"v_add_f32 {t_}, v74, v75")
    a(f"v_add_f32 {su}, {su}, {t_}")
    a(f"v_mul_f32 {su}, 0.5, {su}")
    for r in range(8):
        a(f"v_add_f32 {su}, {su}, {V(64 + r)}")
    g.xlane_reduce(a, "v_add_f32", su, t_, (16, 32))
    a(f"v_rcp_f32 {su}, {su}")
    for r in range(16):
        a(f"v_mul_f32 {V(O + r)}, {V(O + r)}, {su}")
    g.pack8(a, 64, O)
    g.pack8(a, 68, O + 8)
    a(f"s_lshl_b32 {sT0}, {sSEG}, 1")
    a(f"s_add_u32 {sT0}, {sT0}, {sQT}")
    a(f"s_lshl_b32 {sT0}, {sT0}, 17")
    a(f"s_lshl_b32 {sT1}, {sH}, 12")
    a(f"s_add_u32 {sT0}, {sT0}, {sT1}")
    a(f"s_lshl_b32 {sT1}, {sFH}, 11")
    a(f"s_add_u32 {sT0}, {sT0}, {sT1}")
    a(f"s_add_u32 {sT0}, {sT0}, {g.OB}")
    a(f"buffer_store_dwordx4 {V(64, 4)}, {vL16}, {sWS}, {sT0} offen sc1")
    a(f"buffer_store_dwordx4 {V(68, 4)}, {vL16}, {sWS}, {sT0} offen offset:1024 sc1")
    a("s_waitcnt vmcnt(0)")
    a("s_barrier")
    a(f"s_cmp_lg_u32 {sWV}, 0")
    a("s_cbranch_scc1 L_wb_att_done")
    a(f"s_lshl_b32 {sT0}, {sSEG}, 5")
    a(f"s_add_u32 {sT0}, {sT0}, {sH}")
    a(f"s_lshl_b32 {sT0}, {sT0}, 2")
    a(f"s_add_u32 {sT0}, {sT0}, {g.OFLAG}")
    a(f"v_mov_b32 {vT0}, {sT0}")
    a(f"v_mov_b32 {vT1}, 1")
    g.set_flag(a, vT0, vT1)
    a.label("L_wb_att_done")
    a(f"s_cmp_eq_u32 {sORD}, 0")
    a("s_cbranch_scc0 L_wb_next")
    a.label("L_wb_out")
    a(f"s_lshr_b32 {sT0}, {sTEAM}, 1")
    a(f"s_add_u32 {sSO}, {sN}, {sT0}")
    a(f"s_cmp_ge_u32 {sSO}, 64")
    a("s_cbranch_scc1 L_wb_out_done")
    a(f"s_lshl_b32 {sT0}, {sSO}, 7")
    a(f"s_add_u32 {sT0}, {sT0}, {g.OFLAG}")
    g.poll(a, sWS, vFL8, vT1, "v_cmp_ne_u32", 1, soff=sT0, sleep=4)
    a(f"s_and_b32 {sT2}, {sTEAM}, 1")
    a(f"s_lshl_b32 {sT0}, {sSO}, 1")
    a(f"s_add_u32 {sT2}, {sT0}, {sT2}")
    a(f"s_lshl_b32 {sT0}, {sT2}, 17")
    a(f"s_lshl_b32 {sT1}, {sWV}, 15")
    a(f"s_add_u32 {sT0}, {sT0}, {sT1}")
    a(f"s_add_u32 {sT0}, {sT0}, {g.OB}")
    for k in range(32):
        if k and k % 4 == 0: a(f"s_add_u32 {sT0}, {sT0}, 4096")
        a(f"buffer_load_dwordx4 {V(128 + 4*k, 4)}, {vL16}, {sWS}, {sT0} offen offset:{1024*(k & 3)} sc1")
    D = 64
    for k in range(32):
        a(f"s_waitcnt vmcnt({31 - k})")
        for cb in range(2):
            d = V(D + 4*cb, 4)
            a(f"{MF} {d}, {g.wfrag('a', 0, k, cb)}, {V(128 + 4*k, 4)}, {d if k else 0}")
    a(f"s_lshl_b32 {sT0}, {sWV}, 11")
    a(f"s_add_u32 {sT0}, {sT0}, {sPAR}")
    a(f"v_add_u32 {vT0}, {sT0}, {vL16}")
    a(f"ds_write_b128 {vT0}, {V(D, 4)}")
    a(f"ds_write_b128 {vT0}, {V(D + 4, 4)} offset:1024")
    a("s_waitcnt lgkmcnt(0)")
    a("s_barrier")
    a(f"s_cmp_lg_u32 {sWV}, 0")
    a("s_cbranch_scc1 L_wb_out_skip")
    for k in range(6):
        a(f"ds_read_b128 {V(72 + 4*k, 4)}, {vT0} offset:{2048 + 1024*k}")
    a("s_waitcnt lgkmcnt(0)")
    for k in range(3):
        for r in range(8):
            a(f"v_add_f32 {V(D + r)}, {V(D + r)}, {V(72 + 8*k + r)}")
    g.pack8(a, 72, D)
    a(f"s_lshl_b32 {sT2}, {sT2}, 15")
    a(f"buffer_store_dwordx4 {V(72, 4)}, {vOUTOFF}, {g.sOUT}, {sT2} offen")
    a.label("L_wb_out_skip")
    a(f"s_xor_b32 {sPAR}, {sPAR}, 8192")
    a.label("L_wb_out_done")
    a(f"s_cmp_eq_u32 {sORD}, 0")
    a("s_cbranch_scc0 L_wb_att")
    a.label("L_wb_next")
    a(f"s_add_u32 {sN}, {sN}, 6")
    a(f"s_cmp_lt_u32 {sN}, 64")
    a("s_cbranch_scc1 L_wb_round")
    a("s_waitcnt vmcnt(0)")
```

```python
import sys, os
sys.path.insert(0, os.path.dirname(os.path.abspath(__file__)))
from asmlib import *

NAME = "concat_heads__linear_attn_block__memory_aug_recurrent_mem_tr__prompt"
KN = NAME + "_kernel"

KVFLAG, OFLAG, KMFLAG, AFLAG, OAFLAG = 0x0000, 0x2000, 0x4000, 0x5000, 0x5400
INBOX, RING = 0x40000, 0x80000
KVP, PQ, OA = 0x100000, 0x200000, 0x400000
KMVM, OB, QKV = 0x800000, 0x1800000, 0x2800000
DBGDUMP = 0x6000000
WS_BYTES = 0x10000000
D_CNT0, D_RBAR, D_CNT, D_ZDONE = 0, 64, 128, 192
LDS_BYTES = 163840
LDS_TICKET = LDS_BYTES - 16

sWS, sDBG, sW, sX, sOUT = S(4, 4), S(8, 4), S(12, 4), S(16, 4), S(20, 4)
sWV, sTK, sXCC, sBUD = "s24", "s25", "s26", "s27"
P_AX, P_AWQKV, P_AWO, P_BX, P_MEM0, P_WQ, P_WK, P_WV, P_WO, P_OUT, P_DBG, P_WS = 64, 66, 68, 70, 72, 74, 76, 78, 80, 84, 86, 88

LOG2E = 1.4426950408889634
import struct
def f2u(x): return struct.unpack("<I", struct.pack("<f", x))[0]
SCALE_B = f2u(128 ** -0.5 * LOG2E)

MF = "v_mfma_f32_16x16x32_bf16"
SM = "v_smfmac_f32_16x16x64_bf16"

def srd(a, base, ptr, nbytes):
    a(f"s_mov_b32 s{base}, s{ptr}")
    a(f"s_and_b32 s{base+1}, s{ptr+1}, 0xffff")
    a(f"s_mov_b32 s{base+2}, {nbytes}")
    a(f"s_mov_b32 s{base+3}, 0x20000")

def poll(a, srd_, vaddr, vtmp, cmp_fail, thr, soff="0", off=0, sleep=2):
    L = a.newlabel("poll"); D = a.newlabel("polld")
    a.label(L)
    a(f"buffer_load_dword {vtmp}, {vaddr}, {srd_}, {soff} offen offset:{off} sc1")
    a("s_waitcnt vmcnt(0)")
    a(f"{cmp_fail} vcc, {thr}, {vtmp}")
    a(f"s_cbranch_vccz {D}")
    a(f"s_sub_u32 {sBUD}, {sBUD}, 1")
    a("s_cbranch_scc1 L_exit")
    a(f"s_sleep {sleep}")
    a(f"s_branch {L}")
    a.label(D)

def wait_zdone(a, vt0, vt1):
    a(f"v_mov_b32 {vt0}, {D_ZDONE}")
    poll(a, sDBG, vt0, vt1, "v_cmp_gt_u32", 32)

def set_flag(a, vaddr, vval, soff="0", off=0):
    a("s_mov_b64 exec, 1")
    a(f"buffer_store_dword {vval}, {vaddr}, {sWS}, {soff} offen offset:{off} sc1")
    a("s_mov_b64 exec, -1")

ROWMAP = {
    "sparse": (lambda gb, u: (16, 4, 8, 1), lambda m: 32 * (m >> 1) + 2 * (m & 1)),
    "dense":  (lambda gb, u: (16, 8, 2, 1), lambda m: 32 * (m >> 1) + 4 * (m & 1)),
    "rwo":    (lambda gb, u: (4, 32, 16, 1), lambda m: 8 * (m >> 1) + 2 * (m & 1)),
    "ident":  (lambda gb, u: (8, 4, 2, 1), lambda m: 16 * m),
}

def loader_voff(a, vd, vl, rowmap, RS, natural, scol, vt0, vt1, stmp):
    ch, cl, uh, ul = ROWMAP[rowmap][0](0, 0)
    a(f"v_bfe_u32 {vt0}, {vl}, 5, 1")
    a(f"v_mul_u32_u24 {vd}, {ch}, {vt0}")
    for bit, co in ((4, cl), (3, uh), (2, ul)):
        a(f"v_bfe_u32 {vt0}, {vl}, {bit}, 1")
        a(f"v_mul_u32_u24 {vt0}, {co}, {vt0}")
        a(f"v_add_u32 {vd}, {vd}, {vt0}")
    a(f"s_mov_b32 {stmp}, {RS}")
    a(f"v_mul_lo_u32 {vd}, {vd}, {stmp}")
    a(f"v_and_b32 {vt0}, 3, {vl}")
    if natural:
        a(f"v_bfe_u32 {vt1}, {vl}, 4, 1")
        a(f"v_lshlrev_b32 {vt1}, 1, {vt1}")
        a(f"v_xor_b32 {vt0}, {vt0}, {vt1}")
    a(f"v_lshlrev_b32 {vt0}, 4, {vt0}")
    a(f"v_add3_u32 {vd}, {vd}, {vt0}, {scol}")

def loader_traddr(a, vn0, vn1, vi, vl, sbase, vt0, vt1):
    a(f"v_lshrrev_b32 {vt0}, 2, {vl}")
    a(f"v_lshlrev_b32 {vt0}, 6, {vt0}")
    a(f"v_add_u32 {vt0}, {sbase}, {vt0}")
    if vi is not None:
        a(f"v_and_b32 {vt1}, 3, {vl}")
        a(f"v_lshlrev_b32 {vt1}, 4, {vt1}")
        a(f"v_add_u32 {vi}, {vt0}, {vt1}")
    if vn0 is not None:
        a(f"v_and_b32 {vt1}, 3, {vl}")
        a(f"v_lshlrev_b32 {vt1}, 3, {vt1}")
        a(f"v_add_u32 {vt0}, {vt0}, {vt1}")
        a(f"v_bfe_u32 {vt1}, {vl}, 4, 1")
        a(f"v_lshlrev_b32 {vt1}, 5, {vt1}")
        a(f"v_add_u32 {vn0}, {vt0}, {vt1}")
        a(f"v_xor_b32 {vt1}, 32, {vt1}")
        a(f"v_add_u32 {vn1}, {vt0}, {vt1}")

class Stage:
    def __init__(self, ptr, nbytes, voff, rowmap, RS, row0, colb, natural, dst, keep=False):
        self.__dict__.update(locals())

def run_loader(a, stages, sLB, vn0, vn1, vi, stmp, l16w=None, vtmp=None, hooks=None, nt="", extra_before=0):
    hooks = hooks or {}
    cur = [None]
    order = []
    for _ in range(extra_before): order.append(None)
    def issue(i):
        st = stages[i]
        if cur[0] != st.ptr:
            srd(a, 12, st.ptr, st.nbytes); cur[0] = st.ptr
        slot = i % 8
        for m in range(4):
            so = (st.row0 + ROWMAP[st.rowmap][1](m)) * st.RS + st.colb
            a(f"s_add_u32 m0, {sLB}, {slot*4096 + m*1024}")
            a(f"s_mov_b32 {stmp}, {so}")
            a(f"buffer_load_dwordx4 {st.voff}, {sW}, {stmp} offen {nt} lds")
            order.append(i)
    n = len(stages)
    for i in range(min(8, n)): issue(i)
    for i in range(n):
        st = stages[i]
        last = max(k for k, x in enumerate(order) if x == i)
        a(f"s_waitcnt vmcnt({min(63, len(order) - 1 - last)})")
        slot = i % 8
        kind, base = st.dst
        R = V if kind == "v" else A
        for t in range(2):
            for m in range(4):
                off = slot * 4096 + m * 1024
                if st.natural:
                    a(f"ds_read_b64_tr_b16 {R(base + 8*t + 2*m, 2)}, {vn0 if t == 0 else vn1} offset:{off}")
                else:
                    a(f"ds_read_b64_tr_b16 {R(base + 8*t + 2*m, 2)}, {vi} offset:{off + 8*t}")
        a("s_waitcnt lgkmcnt(0)")
        if st.keep:
            for q in range(4):
                a(f"ds_write_b128 {l16w}, {V(base + 4*q, 4)} offset:{slot*4096 + q*1024}")
        if i + 8 < n: issue(i + 8)
        if i in hooks:
            fn, nops = hooks[i]
            fn()
            if nops is None: order.clear()
            else:
                for _ in range(nops): order.append(None)

def xtile_setup(a, vdma, vrd, vl, vt0, vt1):
    a(f"v_and_b32 {vt0}, 15, {vl}")
    a(f"v_lshrrev_b32 {vt1}, 4, {vl}")
    for kq in range(4):
        a(f"v_add_u32 {vrd[kq]}, {4*kq}, {vt1}")
        a(f"v_xor_b32 {vrd[kq]}, {vrd[kq]}, {vt0}")
        a(f"v_lshlrev_b32 {vrd[kq]}, 4, {vrd[kq]}")
        a(f"v_lshl_add_u32 {vrd[kq]}, {vt0}, 10, {vrd[kq]}")

def xtile_dma(a, vl, vt, srow0, sbuf, stmp, stmp2):
    a(f"s_and_b32 {stmp}, {sWV}, 1")
    a(f"s_lshl_b32 {stmp}, {stmp}, 3")
    a(f"v_xor_b32 {vt[0]}, {stmp}, {vl}")
    a(f"s_lshl_b32 {stmp}, {sWV}, 13")
    a(f"s_add_u32 {stmp2}, {stmp}, {srow0}")
    a(f"s_add_u32 {stmp}, {stmp}, {sbuf}")
    for i in range(8):
        a(f"v_xor_b32 {vt[1]}, {i}, {vt[0]}")
        a(f"v_lshlrev_b32 {vt[1]}, 4, {vt[1]}")
        a(f"s_add_u32 m0, {stmp}, {i*1024}")
        if i: a(f"s_add_u32 {stmp2}, {stmp2}, 1024")
        a(f"buffer_load_dwordx4 {vt[1]}, {sX}, {stmp2} offen lds")

def wfrag(kind, base, k, t):
    R = V if kind == "v" else A
    return R(base + 16 * (k >> 1) + 8 * t + 4 * (k & 1), 4)

def qkv_gemm(a, vrd, vbuf, ktrans, XR=32, AQ=64, AK=80, AV=96):
    seq = [(k, tt) for k in range(16) for tt in range(2)]
    def rd(i):
        k, tt = seq[i]
        a(f"ds_read_b128 {V(XR + 4*(i % 4), 4)}, {vrd[k & 3]} offset:{(k >> 2)*256 + tt*16384}")
    for i in range(3): rd(i)
    for i, (k, tt) in enumerate(seq):
        nleft = min(len(seq) - 1, i + 2) - i
        a(f"s_waitcnt lgkmcnt({nleft})")
        X = V(XR + 4 * (i % 4), 4)
        for t in range(2):
            d = V(AQ + 8*tt + 4*t, 4)
            a(f"{MF} {d}, {wfrag('v', 128, k, t)}, {X}, {d if k else 0}")
        if i + 3 < len(seq): rd(i + 3)
        for t in range(2):
            if ktrans:
                d = V(AK + 8*tt + 4*t, 4)
                a(f"{MF} {d}, {wfrag('a', 0, k, t)}, {X}, {d if k else 0}")
            else:
                d = V(AK + 8*t + 4*tt, 4)
                a(f"{MF} {d}, {X}, {wfrag('a', 0, k, t)}, {d if k else 0}")
        for t in range(2):
            d = V(AV + 8*t + 4*tt, 4)
            a(f"{MF} {d}, {X}, {wfrag('a', 128, k, t)}, {d if k else 0}")

def pack8(a, dst, src):
    for q in range(4):
        a(f"v_cvt_pk_bf16_f32 {V(dst+q)}, {V(src+2*q)}, {V(src+2*q+1)}")

def xlane_reduce(a, op, v, t, steps):
    for st in steps:
        if st == 8:
            a(f"{op}_dpp {v}, {v}, {v} row_ror:8 row_mask:0xf bank_mask:0xf")
        else:
            a(f"v_mov_b32 {t}, {v}")
            a(f"v_permlane{st}_swap_b32 {v}, {t}")
            a(f"{op} {v}, {v}, {t}")

from role_wb import gen_wb
from role_r import gen_r
from role_wa import gen_wa

def generate(opts=None):
    opts = opts or {}
    a = Asm()
    a.raw(open(os.path.join(os.path.dirname(os.path.abspath(__file__)), "header.txt")).read().rstrip("\n"))
    a.raw(f"; @launch grid=(256,1,1) block=(256,1,1) lds={LDS_BYTES}")
    a.raw('.amdgcn_target "amdgcn-amd-amdhsa--gfx950"')
    a.raw(".text")
    a.raw(f".globl {KN}")
    a.raw(".p2align 8")
    a.raw(f".type {KN},@function")
    a.raw(f"{KN}:")
    a("s_cmp_ge_u32 s2, 256")
    a("s_cbranch_scc1 L_exit")
    a("s_load_dwordx16 s[64:79], s[0:1], 0")
    a("s_load_dwordx8 s[80:87], s[0:1], 64")
    a("s_load_dwordx2 s[88:89], s[0:1], 96")
    a(f"s_getreg_b32 {sXCC}, hwreg(HW_REG_XCC_ID, 0, 4)")
    a("v_lshrrev_b32 v1, 6, v0")
    a(f"v_readfirstlane_b32 {sWV}, v1")
    a("v_and_b32 v0, 63, v0")
    a(f"s_mov_b32 {sBUD}, 0x80000")
    a("s_waitcnt lgkmcnt(0)")
    srd(a, 4, P_WS, WS_BYTES)
    srd(a, 8, P_DBG, 256)
    srd(a, 20, P_OUT, 2048 * 1024 * 2)
    a(f"s_cmp_lg_u32 {sWV}, 0")
    a("s_cbranch_scc1 L_tk_wait")
    a(f"s_lshl_b32 s28, {sXCC}, 2")
    a(f"s_add_u32 s28, s28, {D_CNT}")
    a(f"s_cmp_eq_u32 {sXCC}, 0")
    a(f"s_cselect_b32 s28, {D_CNT0}, s28")
    a("v_mov_b32 v1, s28")
    a("v_mov_b32 v2, 1")
    a(f"v_mov_b32 v3, {LDS_TICKET}")
    a("s_mov_b64 exec, 1")
    a(f"buffer_atomic_add v2, v1, {sDBG}, 0 offen sc0")
    a("s_waitcnt vmcnt(0)")
    a("ds_write_b32 v3, v2")
    a("s_waitcnt lgkmcnt(0)")
    a("s_mov_b64 exec, -1")
    a.label("L_tk_wait")
    a("s_barrier")
    a(f"v_mov_b32 v3, {LDS_TICKET}")
    a("ds_read_b32 v2, v3")
    a("s_waitcnt lgkmcnt(0)")
    a(f"v_readfirstlane_b32 {sTK}, v2")
    a("s_barrier")
    a(f"s_cmp_ge_u32 {sTK}, 32")
    a("s_cbranch_scc1 L_exit")
    a(f"s_cmp_eq_u32 {sXCC}, 0")
    a("s_cbranch_scc1 L_role_r")
    a(f"s_cmp_eq_u32 {sXCC}, 7")
    a("s_cbranch_scc1 L_role_wa")
    a(f"s_cmp_gt_u32 {sXCC}, 7")
    a("s_cbranch_scc0 L_role_wb")
    a.label("L_exit")
    a("s_endpgm")
    g = sys.modules[__name__]
    a.label("L_role_r")
    gen_r(a, g, opts)
    a("s_endpgm")
    a.label("L_role_wb")
    gen_wb(a, g, opts)
    a("s_endpgm")
    a.label("L_role_wa")
    gen_wa(a, g, opts)
    a("s_endpgm")
    a.raw(f""".section .rodata,"a"
.p2align 6
.amdhsa_kernel {KN}
  .amdhsa_next_free_vgpr 512
  .amdhsa_next_free_sgpr 96
  .amdhsa_accum_offset 256
  .amdhsa_group_segment_fixed_size 0
  .amdhsa_kernarg_size 104
  .amdhsa_user_sgpr_count 2
  .amdhsa_user_sgpr_kernarg_segment_ptr 1
  .amdhsa_system_sgpr_workgroup_id_x 1
  .amdhsa_float_denorm_mode_32 3
.end_amdhsa_kernel""")
    return a.text()

if __name__ == "__main__":
    opts = {}
    out = f"cdna_kernels/{NAME}.s"
    for x in sys.argv[1:]:
        if x.startswith("-o"): out = x[2:]
        else:
            k, _, v = x.partition("=")
            opts[k] = int(v) if v.lstrip("-").isdigit() else (v or 1)
    sys.modules["gen"] = sys.modules["__main__"]
    t = generate(opts)
    open(out, "w").write(t)
    print("wrote", out, len(t), "bytes", t.count("\n"), "lines")
```

```python
from asmlib import *

L_VX, L_SX, L_SM, L_VM, L_KX, L_WK = 0, 16384, 20480, 21504, 24576, 32768
ORDER = [0, 1, 2, 3, 4, 5, 6, 7]
QP = "quad_perm:[2,3,0,1] row_mask:0xf bank_mask:0xf"

def gen_r(a, g, opts):
    if opts.get("no_r"):
        return
    WIN = opts.get("win", 5)
    MF, MF16, SM = g.MF, g.MF16, g.SM
    sWV, sWS, sBUD = g.sWV, g.sWS, g.sBUD
    sH = g.sTK
    sLB, sT0, sT1, sT2 = "s28", "s29", "s30", "s31"
    sS, sRC, sRN, sTAG = "s32", "s33", "s34", "s35"
    sKX, sKM, sVXB, sINB = "s36", "s37", "s38", "s39"
    sMASK = S(40, 2)
    sEXLO, sHB0 = S(42, 2), S(44, 2)
    sSC = S(46, 2)
    sRC2, sINB2, sHIS, sVX, sM0N, sW1K, sSMW, sVMW, sOLD, sC32K, sKXL = ["s%d" % i for i in range(48, 59)]
    sONE = S(80, 2)
    sPX = S(82, 2)
    vIDX, vL16, vK0, vK1, vINST, vPUB, vM0, vM1 = ["v%d" % i for i in range(0, 8)]
    SELR, SEL = 8, 12
    vHIS, vOW, vKXR, vSXW = 'v16', 'v17', 'v18', 'v19'
    MEM, KST, AQ, AK, KX, SP = 20, 52, 100, 108, 116, 124
    prof = opts.get("prof")
    cnt = opts.get("cnt")
    PS = [60, 62, 64, 66, 68, 70, 72, 74]
    psn = str(opts.get("ps", "0,1,2,3,4,5,6,7")).split(",")
    def stamp(k):
        if prof and str(k) in psn: a(f"s_memtime {S(PS[psn.index(str(k))], 2)}")
    vL, vOFF, vOFO, vB, vO, vC0, vC1, vT0 = ["v%d" % i for i in range(100, 108)]
    a(f"v_mov_b32 {vL}, v0")
    a(f"s_lshl_b32 {sT2}, {sH}, 8")
    g.loader2_voff(a, vOFF, vL, "sparse2", 8192, sT2, True, vT0, sT0, sT1)
    a(f"s_lshl_b32 {sT0}, {sH}, 17")
    a(f"s_lshl_b32 {sT1}, {sWV}, 8")
    a(f"s_add_u32 {sT2}, {sT0}, {sT1}")
    g.loader2_voff(a, vOFO, vL, "rwo", 1024, sT2, False, vT0, sT0, sT1)
    g.loader2_traddr(a, vB, vL, vT0)
    a(f"v_lshlrev_b32 {vL16}, 4, {vL}")
    WB = 512 * 8192
    St = g.Stage2
    stages = []
    for s in range(8): stages.append(St("coop", g.P_WQ, WB, vOFF, "sparse2", 8192, 8 * s, ("v", 128 + 16 * s)))
    for s in range(8): stages.append(St("coop", g.P_WV, WB, vOFF, "sparse2", 8192, 8 * s, ("a", 16 * s)))
    for ks in range(2):
        for m in range(4):
            stages.append(St("priv", g.P_WO, 4096 * 1024, vOFO, "rwo", 1024, 64 * ks, ("a", 128 + 64 * ks), m=m))
    for s in range(8): stages.append(St("coop", g.P_WK, WB, vOFF, "sparse2", 8192, 8 * s, ("v", 52), keep=True))

    def consts():
        c, gg = "v20", "v21"
        a(f"v_and_b32 {c}, 15, {vL}")
        a(f"v_lshrrev_b32 {gg}, 4, {vL}")
        a(f"v_cmp_gt_u32 {sEXLO}, 8, {c}")
        a(f"v_and_b32 v22, 2, {c}")
        a(f"v_cmp_eq_u32 vcc, 0, v22")
        a(f"s_mov_b64 {sHB0}, vcc")
        a(f"v_mov_b32 v22, 0x4444")
        a(f"v_mov_b32 v23, 0xeeee")
        a(f"v_cndmask_b32 {vIDX}, v23, v22, vcc")
        a(f"v_mov_b32 v22, -1")
        a(f"v_cndmask_b32 {vM0}, 0, v22, vcc")
        a(f"v_not_b32 {vM1}, {vM0}")
        a(f"s_lshl_b32 {sT0}, {sWV}, 12")
        a(f"s_add_u32 {sT0}, {sT0}, {L_WK}")
        a(f"v_add_u32 {vK0}, {sT0}, {vL16}")
        a(f"v_add_u32 {vK1}, 0x10000, {vK0}")
        a(f"s_lshl_b32 {sT0}, {sWV}, 16")
        a(f"s_lshl_b32 {sT1}, {sH}, 8")
        a(f"s_add_u32 {sT0}, {sT0}, {sT1}")
        a(f"s_add_u32 {sT0}, {sT0}, {g.INBOX}")
        a(f"v_lshlrev_b32 {vINST}, 13, {gg}")
        a(f"v_lshl_add_u32 {vINST}, {c}, 4, {vINST}")
        a(f"v_add_u32 {vINST}, {sT0}, {vINST}")
        a(f"s_lshr_b32 {sT0}, {sH}, 3")
        a(f"s_lshl_b32 {sT0}, {sT0}, 8")
        a(f"s_and_b32 {sT1}, {sH}, 3")
        a(f"s_lshl_b32 {sT1}, {sT1}, 6")
        a(f"s_add_u32 {sT0}, {sT0}, {sT1}")
        a(f"s_and_b32 {sT1}, {sH}, 4")
        a(f"s_lshl_b32 {sT1}, {sT1}, 3")
        a(f"s_add_u32 {sT0}, {sT0}, {sT1}")
        a(f"v_bfe_u32 v22, {c}, 1, 2")
        a(f"v_and_b32 v23, 1, {c}")
        a(f"v_lshlrev_b32 {vPUB}, 11, v22")
        a(f"v_lshl_add_u32 {vPUB}, v23, 4, {vPUB}")
        a(f"v_lshrrev_b32 v24, 1, {gg}")
        a(f"v_lshl_add_u32 {vPUB}, v24, 10, {vPUB}")
        a(f"v_and_b32 v24, 1, {gg}")
        a(f"v_lshl_add_u32 {vPUB}, v24, 3, {vPUB}")
        a(f"v_add_u32 {vPUB}, {sT0}, {vPUB}")
        a(f"s_lshr_b32 {sT0}, {sH}, 2")
        a(f"s_lshl_b32 {sT0}, {sT0}, 10")
        a(f"s_and_b32 {sT1}, {sH}, 3")
        a(f"s_lshl_b32 {sT1}, {sT1}, 5")
        a(f"s_add_u32 {sT0}, {sT0}, {sT1}")
        a(f"v_lshlrev_b32 {vHIS}, 8, v22")
        a(f"v_lshl_add_u32 {vHIS}, v23, 4, {vHIS}")
        a(f"v_lshrrev_b32 v24, 1, {gg}")
        a(f"v_lshl_add_u32 {vHIS}, v24, 7, {vHIS}")
        a(f"v_and_b32 v24, 1, {gg}")
        a(f"v_lshl_add_u32 {vHIS}, v24, 3, {vHIS}")
        a(f"v_add_u32 {vHIS}, {sT0}, {vHIS}")
        a(f"s_lshr_b32 {sT0}, {sH}, 2")
        a(f"s_lshl_b32 {sT0}, {sT0}, 7")
        a(f"s_and_b32 {sT1}, {sH}, 3")
        a(f"s_lshl_b32 {sT1}, {sT1}, 11")
        a(f"s_add_u32 {sT0}, {sT0}, {sT1}")
        a(f"v_lshlrev_b32 v125, 10, v23")
        a(f"v_lshl_add_u32 v125, v22, 5, v125")
        a(f"v_lshl_add_u32 v125, {gg}, 3, v125")
        a(f"v_add_u32 v125, {sT0}, v125")
        a(f"v_mov_b32 v25, 0x3f80")
        a(f"v_mov_b32 v26, 0x3f800000")
        a(f"v_cmp_eq_u32 vcc, 0, v23")
        a(f"v_cndmask_b32 v27, v26, v25, vcc")
        a(f"v_lshrrev_b32 v24, 2, {c}")
        a(f"v_cmp_eq_u32 vcc, v24, {gg}")
        a(f"v_cndmask_b32 v27, 0, v27, vcc")
        a(f"v_and_b32 {V(SEL)}, {vM0}, v27")
        a(f"v_and_b32 {V(SEL + 1)}, {vM0}, v27")
        a(f"v_and_b32 {V(SEL + 2)}, {vM1}, v27")
        a(f"v_and_b32 {V(SEL + 3)}, {vM1}, v27")
        for q in range(4):
            a(f"v_cmp_eq_u32 vcc, {2*q}, {c}")
            a(f"v_cndmask_b32 {V(SELR + q)}, 0, v25, vcc")
            a(f"v_cmp_eq_u32 vcc, {2*q + 1}, {c}")
            a(f"v_cndmask_b32 {V(SELR + q)}, {V(SELR + q)}, v26, vcc")
        a(f"s_mov_b32 s46, {g.SCALE_B}")
        a(f"s_mov_b32 s47, {g.SCALE_B}")
        a(f"s_lshl_b32 {sINB}, {sH}, 13")
        a(f"s_add_u32 {sINB}, {sINB}, {g.INBOX}")
        a(f"s_add_u32 {sINB2}, {sINB}, 4096")
        a(f"s_lshl_b32 {sW1K}, {sWV}, 10")
        a(f"s_lshl_b32 {sSMW}, {sWV}, 2")
        a(f"s_lshr_b32 {sT0}, {sWV}, 1")
        a(f"s_lshl_b32 {sT0}, {sT0}, 10")
        a(f"s_and_b32 {sT1}, {sWV}, 1")
        a(f"s_lshl_b32 {sT1}, {sT1}, 3")
        a(f"s_add_u32 {sVMW}, {sT0}, {sT1}")
        a(f"v_add_u32 {vOW}, {sVMW}, {vL16}")
        a(f"v_add_u32 {vSXW}, {sW1K}, {vL16}")
        a(f"s_lshl_b32 {sKXL}, {sWV}, 11")
        a(f"s_add_u32 {sKXL}, {sKXL}, {L_KX}")
        a(f"v_add_u32 {vKXR}, {sKXL}, {vL16}")
        a(f"s_cmp_eq_u32 {sWV}, 0")
        a(f"s_cselect_b64 {sPX}, {sEXLO}, 0")
        a(f"s_mov_b32 {sC32K}, 32768")

    def clear():
        a("v_mov_b32 v20, 0"); a("v_mov_b32 v21, 0"); a("v_mov_b32 v22, 0"); a("v_mov_b32 v23, 0")
        a("v_mov_b32 v24, -1"); a("v_mov_b32 v25, -1")
        a(f"s_lshl_b32 {sT0}, {sWV}, 11")
        a(f"s_add_u32 {sT0}, {sT0}, {sINB}")
        a(f"buffer_store_dwordx4 v[20:23], {vL16}, {sWS}, {sT0} offen")
        a(f"buffer_store_dwordx4 v[20:23], {vL16}, {sWS}, {sT0} offen offset:1024")
        for k in range(3):
            a(f"s_mov_b32 {sT0}, {g.RING + 8192*k}")
            a(f"buffer_store_dwordx2 v[24:25], {vPUB}, {sWS}, {sT0} offen")

    def arrive():
        L = a.newlabel("arr")
        a(f"s_cmp_lg_u32 {sWV}, 0")
        a(f"s_cbranch_scc1 {L}")
        a(f"v_mov_b32 v20, {g.D_RBAR}")
        a(f"v_mov_b32 v21, 1")
        a("s_mov_b64 exec, 1")
        a(f"buffer_atomic_add v21, v20, {g.sDBG}, 0 offen")
        a("s_mov_b64 exec, -1")
        a.label(L)
    hooks = {0: (consts, 0), 16: (clear, 5), 24: (arrive, 0)}
    g.run_loader2(a, stages, L_WK, vB, vO, vC0, vC1, sT0, sT1, sLB, l16=vL16, keepregs=(52, 68), hooks=hooks, nt=opts.get("rnt", ""))
    g.event(a, opts, 1, "v20", "v21", vL16)
    g.wait_zdone(a, "v20", "v21")
    a(f"v_mov_b32 v20, {g.D_RBAR}")
    g.poll(a, g.sDBG, "v20", "v21", "v_cmp_gt_u32", 32)
    a(f"s_mov_b32 {sS}, 0")
    a(f"s_mov_b32 {sRC}, {g.RING}")
    a(f"s_mov_b32 {sRC2}, {g.RING + 4096}")
    a(f"s_mov_b32 {sRN}, {g.RING + 8192}")
    a(f"s_mov_b32 {sTAG}, 1")
    a(f"s_mul_i32 {sKX}, {sH}, {64 * 24576}")
    a(f"s_lshl_b32 {sT0}, {sWV}, 11")
    a(f"s_add_u32 {sKX}, {sKX}, {sT0}")
    a(f"s_add_u32 {sKX}, {sKX}, {g.QKV + 8192}")
    a(f"s_add_u32 {sVX}, {sKX}, 8192")
    a(f"s_mov_b32 {sHIS}, {g.HIST}")
    a("s_mov_b32 s80, 0x3f803f80")
    a("s_mov_b32 s81, 0x3f803f80")
    a(f"s_lshl_b32 {sVXB}, {sWV}, 11")
    a(f"s_lshl_b32 {sM0N}, {sWV}, 11")
    a(f"s_mov_b64 {sMASK}, 0")

    def kv_ready(sidx, vt0, vt1):
        L = a.newlabel("kvp"); D = a.newlabel("kvd")
        a(f"s_bitcmp1_b64 {sMASK}, {sidx}")
        a(f"s_cbranch_scc1 {D}")
        a(f"s_lshl_b32 {sT0}, {sH}, 8")
        a(f"v_lshrrev_b32 {vt0}, 2, {vL16}")
        a.label(L)
        a(f"buffer_load_dword {vt1}, {vt0}, {sWS}, {sT0} offen offset:{g.KVFLAG} sc1")
        a(f"s_sub_u32 {sBUD}, {sBUD}, 1")
        a("s_cbranch_scc1 L_exit")
        a("s_waitcnt vmcnt(0)")
        a(f"v_cmp_eq_u32 {sMASK}, 1, {vt1}")
        a("s_nop 3")
        a(f"s_bitcmp1_b64 {sMASK}, {sidx}")
        a(f"s_cbranch_scc0 {L}")
        a.label(D)

    pf = [[f"s_mov_b32 m0, {sM0N}", f"buffer_load_dwordx4 {vL16}, {sWS}, {sVX} offen sc1 lds"],
          [f"buffer_load_dwordx4 {vL16}, {sWS}, {sVX} offen offset:1024 sc1 lds"],
          [f"s_mov_b32 m0, {sKXL}", f"buffer_load_dwordx4 {vL16}, {sWS}, {sKX} offen sc1 lds"],
          [f"buffer_load_dwordx4 {vL16}, {sWS}, {sKX} offen offset:1024 sc1 lds"]]
    def kxread():
        a(f"ds_read_b128 {V(KX, 4)}, {vKXR}")
        a(f"ds_read_b128 {V(KX + 4, 4)}, {vKXR} offset:1024")
    def pf_advance():
        if opts.get("x_samepf"):
            a(f"s_xor_b32 {sM0N}, {sM0N}, 8192")
            return
        a(f"s_add_u32 {sKX}, {sKX}, 24576")
        a(f"s_add_u32 {sVX}, {sVX}, 24576")
        a(f"s_xor_b32 {sM0N}, {sM0N}, 8192")

    def kreads(pos):
        k = ORDER[pos]; slot = KST + 16 * (pos % 3)
        return [f"ds_read_b128 {V(slot + 4*q, 4)}, {vK1 if k >= 4 else vK0} offset:{(k & 3)*16384 + q*1024}" for q in range(4)]

    def pre_step():
        for p in range(3):
            for x in kreads(p): a(x)
        for r in range(0, 16, 2): a(f"v_mov_b64 {V(AQ + r, 2)}, 0")

    def mload(pos):
        k = ORDER[pos]
        a(f"buffer_load_dwordx4 {V(MEM + 4*k, 4)}, {vL16}, {sWS}, {sRC2 if k >= 4 else sRC} offen offset:{1024*(k & 3)} sc1")

    g.event(a, opts, 2, "v20", "v21", vL16)
    kv_ready(sS, "v20", "v21")
    a(f"s_mov_b32 {sT2}, 1")
    kv_ready(sT2, "v20", "v21")
    g.event(a, opts, 3, "v20", "v21", vL16)
    for x in pf:
        for y in x: a(y)
    pf_advance()
    a("s_waitcnt vmcnt(0) lgkmcnt(0)")
    kxread()
    pre_step()
    if cnt:
        a("s_mov_b32 s76, 0"); a("s_mov_b32 s77, 0"); a("s_mov_b32 s78, 0")
    a(f"s_cmp_lg_u32 {sWV}, 0")
    a("s_cbranch_scc1 L_r_b3")
    g.srd(a, 16, g.P_MEM0, 8192)
    a(f"buffer_load_dwordx2 {V(SP + 2, 2)}, v125, {g.sX}, 0 offen")
    a("s_waitcnt vmcnt(0)")
    a(f"v_min_u32 {V(SP + 2)}, 0xfffffffe, {V(SP + 2)}")
    a(f"s_mov_b64 exec, {sEXLO}")
    a(f"buffer_store_dwordx2 {V(SP + 2, 2)}, {vPUB}, {sWS}, {sRC} offen")
    a("s_mov_b64 exec, -1")
    a.raw(".p2align 6")
    a.label("L_r_b3")
    a("s_barrier")
    stamp(0)
    for _ in range(opts.get("d3", 0)): a("s_nop 7")
    vC = V(SP)
    VA = KST + 32
    NV = opts.get("nv", 8)
    pace = opts.get("pace", 12)
    def kreads_i(i):
        k = ORDER[i % 8]; slot = KST + 16 * (i % 3)
        return [f"ds_read_b128 {V(slot + 4*q, 4)}, {vK1 if k >= 4 else vK0} offset:{(k & 3)*16384 + q*1024}" for q in range(4)]
    a.label("L_r_fill")
    for i in range(WIN):
        if i: a(f"s_nop {pace - 1}")
        mload(i)
    a.label("L_r_att0")
    def attempt(f):
        k = ORDER[f]
        a(f"s_waitcnt vmcnt({WIN - 1})")
        a(f"v_max_u32 {vC}, {V(MEM + 4*k)}, {V(MEM + 4*k + 2)}")
        a(f"v_cmp_eq_u32 vcc, -1, {vC}")
        mload((f + WIN) % 8)
        if f:
            for x in kreads_i(f + 2): a(x)
            if cnt: a("s_add_u32 s76, s76, 1")
    stubs = []
    D0 = opts.get("d0", 6)
    pfrest = list(range(max(0, 8 - D0), 4))
    def pfx():
        if pfrest:
            n = pfrest.pop(0)
            if n == 2 and D0 != 6: a(pf[2][0])
            if n == 0 and D0 != 8: a(pf[0][0])
            a(pf[n][-1])
    NB = opts.get("nb", 2)
    def variant(f):
        for j in range(8):
            i = f + j
            k = ORDER[i % 8]; slot = KST + 16 * (i % 3)
            kn = ORDER[(i + 1) % 8]
            M = V(MEM + 4*k, 4)
            nl = 4 * (min(7, j + 2) - j)
            ndma = max(0, min(4, j - D0))
            if j > NB: a(f"s_waitcnt vmcnt({min(7, j + WIN - 1) - j + ndma}) lgkmcnt({nl})")
            else: a(f"s_waitcnt lgkmcnt({nl})")
            a(f"{SM} {V(AK, 4)}, {M}, {V(slot, 8)}, {vIDX}")
            if j and j + WIN <= 7: mload((i + WIN) % 8)
            if D0 <= j < D0 + 4: a(pf[j - D0][-1])
            if j > NB: a(f"v_max3_u32 {vC}, {vC}, {V(MEM + 4*k)}, {V(MEM + 4*k + 2)}")
            a(f"{SM} {V(AK + 4, 4)}, {M}, {V(slot + 8, 8)}, {vIDX}")
            kr = kreads_i(i + 3) if j + 3 <= 7 else []
            if j < NB:
                a(f"s_waitcnt vmcnt({min(7, j + WIN) - (j + 1)})")
                a(kr.pop(0))
                a(f"v_max_u32 {vC}, {V(MEM + 4*kn)}, {V(MEM + 4*kn + 2)}")
                a(f"v_cmp_eq_u32 vcc, -1, {vC}")
            else:
                for x in kr[:2]: a(x)
                kr = kr[2:]
            if j == 7: a(f"v_cmp_eq_u32 vcc, -1, {vC}")
            a(f"{SM} {V(AQ, 4)}, {M}, {V(128 + 16*k, 8)}, {vIDX}")
            for x in kr: a(x)
            if j + 1 - D0 in (0, 2): a(pf[j + 1 - D0][0])
            if j == 7:
                a(f"s_mov_b64 exec, {sPX}")
                a(f"buffer_store_dwordx2 {V(SP + 2, 2)}, {vHIS}, {sWS}, {sHIS} offen sc1")
                a("s_mov_b64 exec, -1")
            a(f"{SM} {V(AQ + 4, 4)}, {M}, {V(128 + 16*k + 8, 8)}, {vIDX}")
            if j < NB:
                a(f"s_cbranch_vccnz L_r_rt{f}_{j + 1}")
                a.label(f"L_r_ok{f}_{j + 1}")
                stubs.append((f, j + 1))
        if f:
            a("s_cbranch_vccz L_r_p1ok")
            a("s_branch L_r_redo")
        else:
            a("s_cbranch_vccnz L_r_redo")
    assert WIN == 5 and NB == 2
    attempt(0)
    a("s_cbranch_vccnz L_r_att1")
    stamp(1)
    variant(0)
    a.label("L_r_p1ok")
    stamp(2)
    vq = [(ORDER[p], t) for p in range(8) for t in range(2)]
    def vmm(n=1):
        for _ in range(n):
            if vq:
                k, t = vq.pop(0)
                a(f"{SM} {V(VA + 4*t, 4)}, {V(MEM + 4*k, 4)}, {A(16*k + 8*t, 8)}, {vIDX}")
    AT, D2, QK, SS = KST, KST + 8, KST, KST + 16
    ONES = KST + 28
    def cvt(d, s0): a(f"v_cvt_pk_bf16_f32 {V(d)}, {V(s0)}, {V(s0 + 1)}")
    def add(d, x, y): a(f"v_add_f32 {V(d)}, {V(x)}, {V(y)}")
    tSXW, tSMW = vSXW, V(SP + 1)
    R1, R2, R3 = AQ, AQ + 1, AQ + 2
    tVXR = V(AQ + 3)
    tOW, tOS = vOW, V(AQ + 6)
    OUT = [KST + 40, KST + 44, AQ + 8, AQ + 12]
    cvt(AT + 2, AK)
    cvt(AT + 3, AK + 2)
    cvt(AT + 6, AK + 4)
    cvt(AT + 0, AQ)
    cvt(AT + 1, AQ + 2)
    cvt(AT + 7, AK + 6)
    a(f"v_mov_b64 {V(VA, 2)}, 0")
    a(f"{MF} {V(D2, 4)}, {V(AT, 4)}, {V(SEL, 4)}, 0")
    pfx()
    cvt(AT + 4, AQ + 4)
    cvt(AT + 5, AQ + 6)
    a(f"v_mov_b64 {V(VA + 2, 2)}, 0")
    a(f"v_mov_b64 {V(VA + 4, 2)}, 0")
    a(f"{MF} {V(D2 + 4, 4)}, {V(AT + 4, 4)}, {V(SEL, 4)}, 0")
    stamp("a")
    a(f"s_mov_b64 vcc, {sHB0}")
    a(f"v_mov_b64 {V(VA + 6, 2)}, 0")
    a(f"v_add_u32 {tSMW}, {sSMW}, {vL16}")
    vmm(1)
    a("s_nop 1")
    cvt(QK, D2)
    cvt(QK + 1, D2 + 2)
    cvt(QK + 2, D2 + 4)
    cvt(QK + 3, D2 + 6)
    a(f"v_xor_b32 {V(R1)}, 0x400, {tSXW}")
    a(f"v_xor_b32 {V(R2)}, 0x800, {tSXW}")
    a(f"{MF} {V(SS + 8, 4)}, {V(QK, 4)}, {V(QK, 4)}, 0")
    stamp("b")
    pfx()
    a(f"v_xor_b32 {V(R3)}, 0xc00, {tSXW}")
    a(f"v_add_u32 {tVXR}, {sVXB}, {vL16}")
    a(f"{MF} {V(SS, 4)}, {V(KX, 4)}, {V(QK, 4)}, 0")
    a(f"v_mov_b64 {V(OUT[0], 2)}, 0")
    a(f"v_mov_b64 {V(OUT[0] + 2, 2)}, 0")
    a(f"{MF} {V(SS + 4, 4)}, {V(KX + 4, 4)}, {V(QK, 4)}, 0")
    a(f"v_cndmask_b32_dpp {V(SS + 10)}, {V(SS + 11)}, {V(SS + 10)}, vcc {QP}")
    a(f"ds_write_b32 {tSMW}, {V(SS + 10)} offset:{L_SM}")
    vmm(1)
    pfx()
    for r in range(4):
        a(f"v_cndmask_b32_dpp {V(SS + r)}, {V(SS + 4 + r)}, {V(SS + r)}, vcc {QP}")
    a(f"ds_write_b128 {tSXW}, {V(SS, 4)} offset:{L_SX}")
    stamp("c")
    fill = [f"v_mov_b64 {V(OUT[n] + r, 2)}, 0" for n in (1, 2, 3) for r in (0, 2)] + \
           [f"v_xor_b32 {tOS}, 32, {vL16}", f"v_mov_b64 {V(ONES, 2)}, {sONE}", f"v_mov_b64 {V(ONES + 2, 2)}, {sONE}"]
    n1 = opts.get("n1", 4)
    for i in range(n1):
        vmm(1)
        if i == 1: pfx()
        if fill: a(fill.pop(0))
    assert not pfrest
    stamp("c2")
    a("s_waitcnt lgkmcnt(0)")
    stamp("d")
    a("s_barrier")
    stamp(3)
    PX, PM = KST, KST + 12
    VXR = SS + 4
    a(f"ds_read_b128 {V(PX, 4)}, {V(R1)} offset:{L_SX}")
    vmm(1)
    a(f"ds_read_b128 {V(PX + 4, 4)}, {V(R2)} offset:{L_SX}")
    a(f"ds_read_b128 {V(PX + 8, 4)}, {V(R3)} offset:{L_SX}")
    a(f"ds_read_b128 {V(PM, 4)}, {vL16} offset:{L_SM}")
    n2 = opts.get("n2", 3)
    for i in range(n2):
        vmm(1)
        if i == 0:
            a(f"ds_read_b128 {V(VXR, 4)}, {tVXR} offset:{L_VX}")
            a(f"ds_read_b128 {V(VXR + 4, 4)}, {tVXR} offset:{L_VX + 1024}")
        if fill: a(fill.pop(0))
    stamp("e0")
    a("s_waitcnt lgkmcnt(5)")
    stamp("e1")
    add(SS, SS, PX)
    vmm(1)
    add(SS + 1, SS + 1, PX + 1)
    vmm(1)
    a("s_waitcnt lgkmcnt(3)")
    add(SS + 2, SS + 2, PX + 2)
    vmm(opts.get("n3", 1))
    a("s_waitcnt lgkmcnt(2)")
    stamp("e")
    add(SS + 3, SS + 3, PX + 3)
    for r in range(4): add(PX + 4 + r, PX + 4 + r, PX + 8 + r)
    add(PM, PM, PM + 1); add(PM + 2, PM + 2, PM + 3)
    for r in range(4): add(SS + r, SS + r, PX + 4 + r)
    add(PM, PM, PM + 2)
    mx, tm = V(SP), V(SP + 1)
    mc, em = SP + 2, SP + 3
    a(f"v_max3_f32 {mx}, {V(SS)}, {V(SS + 1)}, {V(SS + 2)}")
    a(f"v_max3_f32 {mx}, {mx}, {V(SS + 3)}, {V(PM)}")
    stamp("e2")
    vmm(1)
    a(f"v_max_f32_dpp {mx}, {mx}, {mx} {QP}")
    a(f"v_mov_b32 {tm}, {mx}")
    vmm(1)
    a(f"v_permlane16_swap_b32 {mx}, {tm}")
    a(f"v_max_f32 {mx}, {mx}, {tm}")
    a(f"v_mov_b32 {tm}, {mx}")
    vmm(16)
    a(f"v_permlane32_swap_b32 {mx}, {tm}")
    a(f"v_max_f32 {mx}, {mx}, {tm}")
    while fill: a(fill.pop(0))
    stamp("f")
    a(f"v_mul_f32 {V(mc)}, s46, {mx}")
    for r in range(4):
        a(f"v_fma_f32 {V(SS + r)}, {V(SS + r)}, s46, -{V(mc)}")
    for r in range(4):
        a(f"v_exp_f32 {V(SS + r)}, {V(SS + r)}")
    E, VMO = KST + 8, KST + 14
    B1, B2, B3 = KST, KST + 4, KST + 10
    cvt(E, SS)
    cvt(E + 1, SS + 2)
    a(f"v_and_b32 {V(B1)}, {V(E)}, {vM0}")
    a(f"v_and_b32 {V(B1 + 1)}, {V(E + 1)}, {vM0}")
    a(f"v_and_b32_dpp {V(B1 + 2)}, {V(E)}, {vM0} {QP}")
    a(f"v_and_b32_dpp {V(B1 + 3)}, {V(E + 1)}, {vM0} {QP}")
    a(f"v_fma_f32 {V(em)}, {V(PM)}, s46, -{V(mc)}")
    a(f"v_exp_f32 {V(em)}, {V(em)}")
    stamp(4)
    SU, O = SS, AQ
    a(f"{MF} {V(SU, 4)}, {V(ONES, 4)}, {V(B1, 4)}, 0")
    a("s_waitcnt lgkmcnt(0)")
    a(f"v_and_b32_dpp {V(B2)}, {V(E)}, {vM1} {QP}")
    a(f"v_and_b32_dpp {V(B2 + 1)}, {V(E + 1)}, {vM1} {QP}")
    a(f"{MF} {V(O, 4)}, {V(VXR, 4)}, {V(B1, 4)}, 0")
    a(f"v_and_b32 {V(B2 + 2)}, {V(E)}, {vM1}")
    a(f"v_and_b32 {V(B2 + 3)}, {V(E + 1)}, {vM1}")
    a(f"v_mov_b32_dpp {mx}, {V(em)} quad_perm:[0,1,0,1] row_mask:0xf bank_mask:0xf")
    a(f"v_mov_b32_dpp {tm}, {V(em)} quad_perm:[2,3,2,3] row_mask:0xf bank_mask:0xf")
    a(f"{MF} {V(SU, 4)}, {V(ONES, 4)}, {V(B2, 4)}, {V(SU, 4)}")
    a(f"v_cvt_pk_bf16_f32 {mx}, {mx}, {tm}")
    a(f"v_and_b32 {V(B3)}, {mx}, {vM0}")
    a(f"v_and_b32 {V(B3 + 1)}, {mx}, {vM1}")
    a(f"{MF} {V(O, 4)}, {V(VXR + 4, 4)}, {V(B2, 4)}, {V(O, 4)}")
    add(VA, VA, VA + 2); add(VA + 1, VA + 1, VA + 3)
    a(f"{MF16} {V(SU, 4)}, {V(ONES, 2)}, {V(B3, 2)}, {V(SU, 4)}")
    add(VA + 4, VA + 4, VA + 6); add(VA + 5, VA + 5, VA + 7)
    cvt(VMO, VA); cvt(VMO + 1, VA + 4)
    a(f"{MF16} {V(O, 4)}, {V(VMO, 2)}, {V(B3, 2)}, {V(O, 4)}")
    stamp("g")
    a(f"v_rcp_f32 {V(SU)}, {V(SU)}")
    for r in range(4): a(f"v_mul_f32 {V(O + r)}, {V(O + r)}, {V(SU)}")
    cvt(E, O); cvt(E + 1, O + 2)
    a(f"ds_write_b64 {tOW}, {V(E, 2)} offset:{L_VM}")
    stamp("i")
    a("s_waitcnt lgkmcnt(0)")
    a("s_barrier")
    stamp("h")
    OAq = MEM
    a(f"ds_read_b128 {V(OAq, 4)}, {vL16} offset:{L_VM}")
    a(f"ds_read_b128 {V(OAq + 4, 4)}, {tOS} offset:{L_VM}")
    a(f"ds_read_b128 {V(OAq + 8, 4)}, {vL16} offset:{L_VM + 1024}")
    a(f"ds_read_b128 {V(OAq + 12, 4)}, {tOS} offset:{L_VM + 1024}")
    G = KST
    def wo(j, sw, n):
        a(f"{SM} {V(OUT[n], 4)}, {V(OAq + 8*j + 4*sw, 4)}, {A(128 + 64*j + 32*sw + 8*n, 8)}, {vIDX}")
    for x, (j, sw) in enumerate(((0, 0), (0, 1), (1, 0), (1, 1))):
        a(f"s_waitcnt lgkmcnt({3 - x})")
        if x == 0: stamp(5)
        wo(j, sw, 0); wo(j, sw, 1)
    wo(0, 0, 2)
    cvt(G, OUT[0])
    wo(0, 0, 3)
    cvt(G + 1, OUT[0] + 2)
    wo(0, 1, 2)
    cvt(G + 2, OUT[1])
    wo(0, 1, 3)
    cvt(G + 3, OUT[1] + 2)
    wo(1, 0, 2)
    a(f"v_and_or_b32 {V(G)}, {V(G)}, -2, {sTAG}")
    if opts.get("st0", 1) == 1: a(f"buffer_store_dwordx4 {V(G, 4)}, {vINST}, {sWS}, 0 offen")
    wo(1, 1, 2)
    wo(1, 0, 3)
    wo(1, 1, 3)
    stamp("k")
    if opts.get("st0", 1) == 0: a(f"buffer_store_dwordx4 {V(G, 4)}, {vINST}, {sWS}, 0 offen")
    cvt(G + 4, OUT[2])
    cvt(G + 5, OUT[2] + 2)
    a(f"v_and_or_b32 {V(G + 4)}, {V(G + 4)}, -2, {sTAG}")
    cvt(G + 6, OUT[3])
    cvt(G + 7, OUT[3] + 2)
    stamp("l")
    a(f"buffer_store_dwordx4 {V(G + 4, 4)}, {vINST}, {sWS}, {sC32K} offen")
    stamp(6)
    pre_step()
    pf_advance()
    a(f"s_add_u32 {sS}, {sS}, 1")
    a(f"s_add_u32 {sHIS}, {sHIS}, 8192")
    a(f"s_xor_b32 {sVXB}, {sVXB}, 8192")
    a(f"s_mov_b32 {sOLD}, {sRC}")
    a(f"s_mov_b32 {sRC}, {sRN}")
    a(f"s_add_u32 {sRC2}, {sRC}, 4096")
    a(f"s_add_u32 {sRN}, {sRN}, 8192")
    a(f"s_cmp_eq_u32 {sRN}, {g.RING + 3*8192}")
    a(f"s_cselect_b32 {sRN}, {g.RING}, {sRN}")
    a(f"s_add_u32 {sT2}, {sS}, 1")
    a(f"s_min_u32 {sT2}, {sT2}, 63")
    kv_ready(sT2, V(SP), V(SP + 1))
    a(f"s_cmp_lg_u32 {sWV}, 0")
    a("s_cbranch_scc1 L_r_other")
    stamp("m")
    for _ in range(opts.get("da", 0)): a("s_nop 7")
    if opts.get("wst"): a("s_waitcnt vmcnt(0)")
    a.label("L_r_pa")
    if cnt: a("s_add_u32 s78, s78, 1")
    for n in range(8):
        a(f"buffer_load_dwordx4 {V(MEM + 4*n, 4)}, {vL16}, {sWS}, {sINB if n < 4 else sINB2} offen offset:{1024*(n & 3)} sc1")
    a(f"s_sub_u32 {sBUD}, {sBUD}, 1")
    a("s_cbranch_scc1 L_exit")
    RD = SP
    tA = V(MEM + 1)
    for n in range(8):
        a(f"s_waitcnt vmcnt({7 - n})")
        a(f"{MF} {V(RD, 4)}, {V(MEM + 4*n, 4)}, {V(SELR, 4)}, {V(RD, 4) if n else 0}")
        if n == 1: a(f"ds_read_b128 {V(KX, 4)}, {vKXR}")
        if n == 2: a(f"ds_read_b128 {V(KX + 4, 4)}, {vKXR} offset:1024")
        if n == 0: a(f"v_xor_b32 {tA}, {sTAG}, {V(MEM)}")
        else: a(f"v_bitop3_b32 {tA}, {tA}, {V(MEM + 4*n)}, {sTAG} bitop3:0xf6")
    a(f"v_and_b32 {tA}, 1, {tA}")
    a(f"v_cmp_ne_u32 vcc, 0, {tA}")
    a(f"v_mov_b64 {V(MEM + 2, 2)}, -1")
    a(f"s_cmp_eq_u32 {sS}, 63")
    a("s_cbranch_vccnz L_r_pa")
    stamp(7)
    a(f"s_mov_b64 exec, {sEXLO}")
    a(f"v_cvt_pk_bf16_f32 {V(RD + 3)}, {V(RD + 2)}, {V(RD + 3)}")
    a(f"v_cvt_pk_bf16_f32 {V(RD + 2)}, {V(RD)}, {V(RD + 1)}")
    a(f"v_min_u32 {V(RD + 2)}, 0xfffffffe, {V(RD + 2)}")
    a("s_cbranch_scc1 L_r_last")
    a(f"buffer_store_dwordx2 {V(RD + 2, 2)}, {vPUB}, {sWS}, {sRC} offen")
    a(f"buffer_store_dwordx2 {V(MEM + 2, 2)}, {vPUB}, {sWS}, {sOLD} offen")
    if opts.get("dumpmem"):
        a(f"s_lshl_b32 {sT0}, {sS}, 13")
        a(f"s_add_u32 {sT0}, {sT0}, {g.DBGDUMP}")
        a(f"buffer_store_dwordx2 {V(RD + 2, 2)}, {vPUB}, {sWS}, {sT0} offen")
    a("s_mov_b64 exec, -1")
    a.label("L_r_endstep")
    a(f"s_xor_b32 {sTAG}, {sTAG}, 1")
    if prof:
        a("s_waitcnt lgkmcnt(0)")
        a(f"s_lshl_b32 {sT0}, {sH}, 2")
        a(f"s_add_u32 {sT0}, {sT0}, {sWV}")
        a(f"s_lshl_b32 {sT0}, {sT0}, 6")
        a(f"s_add_u32 {sT0}, {sT0}, {sS}")
        a(f"s_lshl_b32 {sT0}, {sT0}, 5")
        a(f"s_add_u32 {sT0}, {sT0}, {g.DBGDUMP + 0x100000}")
        for k in range(8): a(f"v_writelane_b32 {V(MEM + 5)}, s{PS[k]}, {k}")
        a(f"v_lshrrev_b32 {V(MEM + 4)}, 2, {vL16}")
        a("s_mov_b64 exec, 0xff")
        a(f"buffer_store_dword {V(MEM + 5)}, {V(MEM + 4)}, {sWS}, {sT0} offen")
        a("s_mov_b64 exec, -1")
    a("s_branch L_r_b3")
    a.label("L_r_other")
    a(f"s_cmp_eq_u32 {sS}, 63")
    a("s_cbranch_scc1 L_r_fin")
    a("s_waitcnt vmcnt(0)")
    kxread()
    a("s_branch L_r_endstep")
    for f in range(1, NV):
        a.label(f"L_r_att{f}")
        attempt(f)
        a(f"s_cbranch_vccnz L_r_att{f + 1}")
        stamp(1)
        variant(f)
    assert NV == 8
    a.label(f"L_r_att{NV}")
    a(f"s_sub_u32 {sBUD}, {sBUD}, 1")
    a("s_cbranch_scc1 L_exit")
    a("s_waitcnt lgkmcnt(0)")
    for p in range(3):
        for x in kreads_i(p): a(x)
    a("s_branch L_r_att0")
    a.label("L_r_redo")
    a(f"s_sub_u32 {sBUD}, {sBUD}, 1")
    a("s_cbranch_scc1 L_exit")
    if cnt: a(f"s_add_u32 s77, s77, {1 << 24}")
    a("s_nop 7")
    a("s_waitcnt vmcnt(0) lgkmcnt(0)")
    pre_step()
    a("s_branch L_r_fill")
    for (f, j) in stubs:
        kn = ORDER[(f + j) % 8]
        a.label(f"L_r_rt{f}_{j}")
        mload((f + j) % 8)
        if cnt: a(f"s_add_u32 s77, s77, {1 << (8 * min(j - 1, 3))}")
        a(f"s_sub_u32 {sBUD}, {sBUD}, 1")
        a("s_cbranch_scc1 L_exit")
        a("s_waitcnt vmcnt(0)")
        a(f"v_max_u32 {vC}, {V(MEM + 4*kn)}, {V(MEM + 4*kn + 2)}")
        a(f"v_cmp_eq_u32 vcc, -1, {vC}")
        a(f"s_cbranch_vccnz L_r_rt{f}_{j}")
        a(f"s_branch L_r_ok{f}_{j}")
    a.label("L_r_last")
    a(f"buffer_store_dwordx2 {V(SP + 2, 2)}, {vHIS}, {sWS}, {sHIS} offen sc1")
    a("s_mov_b64 exec, -1")
    a.label("L_r_fin")
    if cnt:
        a(f"s_lshl_b32 {sT0}, {sH}, 2")
        a(f"s_add_u32 {sT0}, {sT0}, {sWV}")
        a(f"s_lshl_b32 {sT0}, {sT0}, 4")
        a(f"s_add_u32 {sT0}, {sT0}, {g.DBGDUMP + 0x300000}")
        a("v_mov_b32 v20, s76"); a("v_mov_b32 v21, s77"); a("v_mov_b32 v22, s78"); a("v_mov_b32 v23, 0")
        a("s_mov_b64 exec, 1")
        a(f"buffer_store_dwordx4 v[20:23], {vL16}, {sWS}, {sT0} offen")
        a("s_mov_b64 exec, -1")
    g.event(a, opts, 4, V(MEM + 8), V(MEM + 9), vL16)
    a("s_waitcnt vmcnt(0)")
```

```python
from asmlib import *

def gen_wa(a, g, opts):
    MF = g.MF
    sWV, sWS = g.sWV, g.sWS
    sJ, sR = "s28", "s29"
    sLB, sT0, sT1, sT2 = "s33", "s34", "s35", "s36"
    sSEG, sBUFC, sBUFN, sPQ = "s37", "s38", "s39", "s40"
    sN, sL2E, sEPS = "s41", "s42", "s43"
    vL = "v0"
    vOFF, vN0, vN1, vI, vL16 = "v1", "v2", "v3", "v4", "v5"
    vRD = ["v6", "v7", "v8", "v9"]
    vRC = ["v10", "v11", "v12", "v13"]
    vT0, vT1, vT2 = "v14", "v15", "v16"
    a(f"v_lshlrev_b32 {vL16}, 4, {vL}")
    for r in range(4): a(f"v_mov_b32 {V(20 + r)}, 0")
    for r in range(4): a(f"v_mov_b32 {V(28 + r)}, -1")
    a(f"s_lshl_b32 {sT0}, {g.sTK}, 14")
    a(f"s_lshl_b32 {sT1}, {sWV}, 12")
    a(f"s_add_u32 {sT0}, {sT0}, {sT1}")
    a(f"s_add_u32 {sT0}, {sT0}, {g.HIST}")
    for q in range(4):
        a(f"buffer_store_dwordx4 v[28:31], {vL16}, {sWS}, {sT0} offen offset:{1024*q} sc1")
    a(f"s_lshl_b32 {sT0}, {g.sTK}, 10")
    a(f"buffer_store_dwordx4 v[20:23], {vL16}, {sWS}, {sT0} offen sc1")
    a(f"v_mov_b32 v24, {g.D_ZDONE}")
    a(f"v_mov_b32 v25, 1")
    a("s_waitcnt vmcnt(0)")
    a("s_barrier")
    a(f"s_cmp_lg_u32 {sWV}, 0")
    a("s_cbranch_scc1 L_wa_z")
    a("s_mov_b64 exec, 1")
    a(f"buffer_atomic_add v25, v24, {g.sDBG}, 0 offen")
    a("s_mov_b64 exec, -1")
    a.label("L_wa_z")
    if opts.get("no_wa"):
        a("s_waitcnt vmcnt(0)")
        return
    a(f"s_and_b32 {sJ}, {g.sTK}, 3")
    a(f"s_lshr_b32 {sR}, {g.sTK}, 2")
    a(f"s_lshl_b32 {sLB}, {sWV}, 15")
    g.srd(a, 16, g.P_AX, 2048 * 1024)
    a(f"s_lshl_b32 {sSEG}, {sR}, 3")
    a(f"s_mov_b32 {sBUFC}, {131072}")
    a(f"s_mov_b32 {sBUFN}, 0")
    a(f"s_lshl_b32 {sT2}, {sSEG}, 15")
    g.xtile_dma(a, vL, [vT0, vT1], sT2, sBUFC, sT0, sT1)
    stages = []
    vOs = ["v17", "v18", "v19"]
    a(f"s_lshl_b32 {sT2}, {sJ}, 8")
    g.loader2_voff(a, vOs[2], vL, "dense", 3072, sT2, True, vT0, sT0, sT1)
    a(f"v_add_u32 {vOs[0]}, 1024, {vOs[2]}")
    a(f"v_add_u32 {vOs[1]}, 2048, {vOs[2]}")
    g.loader2_traddr(a, vN0, vL, vT0)
    g.xtile_setup(a, None, vRD, vL, vT0, vT1)
    for vo, dst in zip(vOs, (("a", 0), ("a", 128), ("v", 128))):
        for s in range(8):
            stages.append(g.Stage2("coop", g.P_AWQKV, 512 * 3072, vo, "dense", 3072, 64 * s, (dst[0], dst[1] + 16 * s)))
    g.run_loader2(a, stages, 0, vN0, vN1, vT0, vT1, sT0, sT1, sT2)
    g.event(a, opts, 1, vT0, vT1)
    a(f"s_lshl_b32 {sPQ}, {g.sTK}, 16")
    a(f"s_lshl_b32 {sT0}, {sWV}, 11")
    a(f"s_add_u32 {sPQ}, {sPQ}, {sT0}")
    a(f"s_add_u32 {sPQ}, {sPQ}, {g.PQ}")
    a(f"s_mov_b32 {sL2E}, {g.f2u(g.LOG2E)}")
    a(f"s_mov_b32 {sEPS}, {g.f2u(1e-6)}")
    KV, ONES = 112, 20
    for r in range(16): a(f"v_mov_b32 {V(KV + r)}, 0")
    for r in range(4): a(f"v_mov_b32 {V(ONES + r)}, 0x3f803f80")
    a(f"s_mov_b32 {sN}, 0")
    a.label("L_wa_p1")
    a("s_waitcnt vmcnt(0)")
    a("s_barrier")
    a(f"s_cmp_ge_u32 {sN}, 7")
    a("s_cbranch_scc1 L_wa_nopf")
    a(f"s_add_u32 {sT2}, {sSEG}, 1")
    a(f"s_lshl_b32 {sT2}, {sT2}, 15")
    g.xtile_dma(a, vL, [vT0, vT1], sT2, sBUFN, sT0, sT1)
    a.label("L_wa_nopf")
    for q in range(4):
        a(f"v_add_u32 {vRC[q]}, {sBUFC}, {vRD[q]}")
    g.qkv_gemm(a, vRC, None, False)
    for base in (64, 80):
        for r0 in range(0, 16, 8):
            for r in range(8):
                a(f"v_mul_f32 {V(24 + r)}, {sL2E}, {V(base + r0 + r)}")
            for r in range(8):
                a(f"v_min_f32 {V(24 + r)}, 0, {V(24 + r)}")
            for r in range(8):
                a(f"v_exp_f32 {V(24 + r)}, {V(24 + r)}")
            for r in range(8):
                a(f"v_max_f32 {V(base + r0 + r)}, 0, {V(base + r0 + r)}")
            for r in range(8):
                a(f"v_add_f32 {V(24 + r)}, {sEPS}, {V(24 + r)}")
            for r in range(8):
                a(f"v_add_f32 {V(base + r0 + r)}, {V(base + r0 + r)}, {V(24 + r)}")
    a(f"s_lshl_b32 {sT0}, {sN}, 13")
    a(f"s_add_u32 {sT0}, {sT0}, {sPQ}")
    for tt in range(2):
        g.pack8(a, 32 + 4*tt, 64 + 8*tt)
        a(f"buffer_store_dwordx4 {V(32 + 4*tt, 4)}, {vL16}, {sWS}, {sT0} offen offset:{1024*tt}")
    for t in range(2):
        g.pack8(a, 40 + 4*t, 80 + 8*t)
        g.pack8(a, 48 + 4*t, 96 + 8*t)
    for t in range(2):
        a(f"{MF} {V(KV + 4*t, 4)}, {V(40 + 4*t, 4)}, {V(48 + 4*t, 4)}, {V(KV + 4*t, 4)}")
        a(f"{MF} {V(KV + 8 + 4*t, 4)}, {V(40 + 4*t, 4)}, {V(ONES, 4)}, {V(KV + 8 + 4*t, 4)}")
    a(f"s_add_u32 {sSEG}, {sSEG}, 1")
    a(f"s_add_u32 {sN}, {sN}, 1")
    a(f"s_mov_b32 {sT0}, {sBUFC}")
    a(f"s_mov_b32 {sBUFC}, {sBUFN}")
    a(f"s_mov_b32 {sBUFN}, {sT0}")
    a(f"s_cmp_lt_u32 {sN}, 8")
    a("s_cbranch_scc1 L_wa_p1")
    g.event(a, opts, 2, vT0, vT1)
    a("s_nop 7")
    a(f"s_lshl_b32 {sT0}, {sJ}, 3")
    a(f"s_add_u32 {sT0}, {sT0}, {sR}")
    a(f"s_lshl_b32 {sT0}, {sT0}, 14")
    a(f"s_lshl_b32 {sT1}, {sWV}, 12")
    a(f"s_add_u32 {sT0}, {sT0}, {sT1}")
    a(f"s_add_u32 {sT0}, {sT0}, {g.KVP}")
    for q in range(4):
        a(f"buffer_store_dwordx4 {V(KV + 4*q, 4)}, {vL16}, {sWS}, {sT0} offen offset:{1024*q} sc1")
    g.wait_zdone(a, vT0, vT1)
    a("s_barrier")
    a(f"s_cmp_lg_u32 {sWV}, 0")
    a("s_cbranch_scc1 L_wa_f1")
    a(f"s_lshl_b32 {sT0}, {sJ}, 7")
    a(f"s_lshl_b32 {sT1}, {sR}, 2")
    a(f"s_add_u32 {sT0}, {sT0}, {sT1}")
    a(f"s_add_u32 {sT0}, {sT0}, {g.AFLAG}")
    a(f"v_mov_b32 {vT0}, {sT0}")
    a(f"v_mov_b32 {vT1}, 1")
    g.set_flag(a, vT0, vT1)
    a.label("L_wa_f1")
    a(f"s_lshl_b32 {sT0}, {sJ}, 8")
    a(f"s_lshl_b32 {sT1}, {sWV}, 6")
    a(f"s_add_u32 {sT2}, {sT0}, {sT1}")
    g.loader_voff(a, vOFF, vL, "ident", 1024, False, sT2, vT0, vT1, sT0)
    g.loader_traddr(a, None, None, vI, vL, sLB, vT0, vT1)
    stages = [g.Stage(g.P_AWO, 512 * 1024, vOFF, "ident", 1024, 64 * s, 0, False, ("a", 16 * s)) for s in range(8)]
    g.run_loader(a, stages, sLB, vN0, vN1, vI, sT0)
    a(f"v_and_b32 {vT0}, 7, {vL}")
    a(f"v_lshlrev_b32 {vT0}, 2, {vT0}")
    a(f"s_lshl_b32 {sT0}, {sJ}, 7")
    a(f"s_add_u32 {sT0}, {sT0}, {g.AFLAG}")
    g.poll(a, sWS, vT0, vT1, "v_cmp_ne_u32", 1, soff=sT0, sleep=4)
    a(f"s_lshl_b32 {sT0}, {sJ}, 17")
    a(f"s_lshl_b32 {sT1}, {sWV}, 12")
    a(f"s_add_u32 {sT0}, {sT0}, {sT1}")
    a(f"s_add_u32 {sT0}, {sT0}, {g.KVP}")
    for r in range(8):
        if r: a(f"s_add_u32 {sT0}, {sT0}, 16384")
        for q in range(4):
            a(f"buffer_load_dwordx4 {V(128 + 16*r + 4*q, 4)}, {vL16}, {sWS}, {sT0} offen offset:{1024*q} sc1")
    a("s_waitcnt vmcnt(0)")
    for r in range(1, 8):
        for q in range(16):
            a(f"v_add_f32 {V(128 + q)}, {V(128 + q)}, {V(128 + 16*r + q)}")
    KO, ZO = 24, 30
    for o, src in ((KO, 128), (ZO, 136)):
        a(f"v_cvt_pk_bf16_f32 {V(o)}, {V(src)}, {V(src + 1)}")
        a(f"v_cvt_pk_bf16_f32 {V(o + 1)}, {V(src + 2)}, {V(src + 3)}")
        a(f"v_mov_b32 {V(o + 2)}, 0")
        a(f"v_mov_b32 {V(o + 3)}, 0")
        a(f"v_cvt_pk_bf16_f32 {V(o + 4)}, {V(src + 4)}, {V(src + 5)}")
        a(f"v_cvt_pk_bf16_f32 {V(o + 5)}, {V(src + 6)}, {V(src + 7)}")
    g.event(a, opts, 3, vT0, vT1)
    a(f"s_mov_b32 {sT0}, {sPQ}")
    for n in range(8):
        if n: a(f"s_add_u32 {sT0}, {sT0}, 8192")
        for tt in range(2):
            a(f"buffer_load_dwordx4 {V(128 + 8*n + 4*tt, 4)}, {vL16}, {sWS}, {sT0} offen offset:{1024*tt} sc1")
    a(f"s_lshl_b32 {sT0}, {sR}, 18")
    a(f"s_lshl_b32 {sT1}, {sJ}, 2")
    a(f"s_add_u32 {sT1}, {sT1}, {sWV}")
    a(f"s_lshl_b32 {sT1}, {sT1}, 10")
    a(f"s_add_u32 {sT0}, {sT0}, {sT1}")
    a(f"s_add_u32 {sT0}, {sT0}, {g.OA}")
    a("s_waitcnt vmcnt(0)")
    for it in range(16):
        B = V(128 + 4*it, 4)
        N_, D_ = 40 + 16*(it & 1), 48 + 16*(it & 1)
        for t in range(2):
            a(f"{MF} {V(N_ + 4*t, 4)}, {V(KO + 2*t, 4)}, {B}, 0")
            a(f"{MF} {V(D_ + 4*t, 4)}, {V(ZO + 2*t, 4)}, {B}, 0")
        for t in range(2):
            a(f"v_add_f32 {V(D_ + 4*t)}, {sEPS}, {V(D_ + 4*t)}")
            a(f"v_rcp_f32 {V(D_ + 4*t)}, {V(D_ + 4*t)}")
        for t in range(2):
            for r in range(4):
                a(f"v_mul_f32 {V(N_ + 4*t + r)}, {V(N_ + 4*t + r)}, {V(D_ + 4*t)}")
        P_ = 72 + 4*(it & 3)
        g.pack8(a, P_, N_)
        if it: a(f"s_add_u32 {sT0}, {sT0}, 16384")
        a(f"buffer_store_dwordx4 {V(P_, 4)}, {vL16}, {sWS}, {sT0} offen sc1")
    a("s_waitcnt vmcnt(0)")
    a("s_barrier")
    a(f"s_cmp_lg_u32 {sWV}, 0")
    a("s_cbranch_scc1 L_wa_f2")
    a(f"s_lshl_b32 {sT0}, {sR}, 7")
    a(f"s_lshl_b32 {sT1}, {sJ}, 2")
    a(f"s_add_u32 {sT0}, {sT0}, {sT1}")
    a(f"s_add_u32 {sT0}, {sT0}, {g.OAFLAG}")
    a(f"v_mov_b32 {vT0}, {sT0}")
    a(f"v_mov_b32 {vT1}, 1")
    g.set_flag(a, vT0, vT1)
    a.label("L_wa_f2")
    a(f"v_and_b32 {vT0}, 3, {vL}")
    a(f"v_lshlrev_b32 {vT0}, 2, {vT0}")
    a(f"s_lshl_b32 {sT0}, {sR}, 7")
    a(f"s_add_u32 {sT0}, {sT0}, {g.OAFLAG}")
    g.poll(a, sWS, vT0, vT1, "v_cmp_ne_u32", 1, soff=sT0, sleep=4)
    g.event(a, opts, 4, vT0, vT1)
    vOUT = "v17"
    a(f"v_and_b32 {vT0}, 15, {vL}")
    a(f"v_lshrrev_b32 {vT1}, 4, {vL}")
    a(f"v_lshlrev_b32 {vOUT}, 11, {vT0}")
    a(f"v_lshl_add_u32 {vOUT}, {vT1}, 4, {vOUT}")
    a(f"s_lshl_b32 {sT0}, {sJ}, 8")
    a(f"s_lshl_b32 {sT1}, {sWV}, 6")
    a(f"s_add_u32 {sT0}, {sT0}, {sT1}")
    a(f"v_add_u32 {vOUT}, {sT0}, {vOUT}")
    sSRC, sDST = "s44", "s45"
    a(f"s_lshl_b32 {sSRC}, {sR}, 18")
    a(f"s_add_u32 {sSRC}, {sSRC}, {g.OA}")
    a(f"s_lshl_b32 {sDST}, {sR}, 19")
    a(f"s_mov_b32 {sN}, 0")
    a.label("L_wa_p3")
    for k in range(32):
        if k and k % 4 == 0: a(f"s_add_u32 {sSRC}, {sSRC}, 4096")
        a(f"buffer_load_dwordx4 {V(128 + 4*k, 4)}, {vL16}, {sWS}, {sSRC} offen offset:{1024*(k & 3)} sc1")
    a(f"s_add_u32 {sSRC}, {sSRC}, 4096")
    for k in range(32):
        a(f"s_waitcnt vmcnt({31 - k})")
        tt, kk = k >> 4, k & 15
        for cb in range(2):
            d = V(40 + 8*tt + 4*cb, 4)
            a(f"{MF} {d}, {g.wfrag('a', 0, kk, cb)}, {V(128 + 4*k, 4)}, {d if kk else 0}")
    for tt in range(2):
        g.pack8(a, 56 + 4*tt, 40 + 8*tt)
        a(f"buffer_store_dwordx4 {V(56 + 4*tt, 4)}, {vOUT}, {g.sOUT}, {sDST} offen")
        a(f"s_add_u32 {sDST}, {sDST}, 32768")
    a(f"s_add_u32 {sN}, {sN}, 1")
    a(f"s_cmp_lt_u32 {sN}, 8")
    a("s_cbranch_scc1 L_wa_p3")
    a("s_waitcnt vmcnt(0)")
    g.event(a, opts, 5, vT0, vT1)
```

```python
from asmlib import *

def gen_wb(a, g, opts):
    if opts.get("no_wb"):
        return
    MF = g.MF
    sWV, sWS = g.sWV, g.sWS
    sI, sH, sR, sTEAM, sCG = "s28", "s29", "s30", "s31", "s32"
    sLB, sT0, sT1, sT2 = "s33", "s34", "s35", "s36"
    sSEG, sBUFC, sBUFN, sQKV = "s37", "s38", "s39", "s40"
    sN, sSO, sPAR = "s41", "s42", "s43"
    vL = "v0"
    vOFF, vN0, vN1, vI, vL16 = "v1", "v2", "v3", "v4", "v5"
    vRD = ["v6", "v7", "v8", "v9"]
    vRC = ["v10", "v11", "v12", "v13"]
    vT0, vT1, vT2 = "v14", "v15", "v16"
    a(f"s_sub_u32 {sI}, {g.sXCC}, 1")
    a(f"s_lshl_b32 {sI}, {sI}, 5")
    a(f"s_add_u32 {sI}, {sI}, {g.sTK}")
    a(f"s_mul_i32 {sH}, {sI}, 43")
    a(f"s_lshr_b32 {sH}, {sH}, 8")
    assert all((i * 43) >> 8 == i // 6 for i in range(128))
    a.lines.pop(); a.lines.pop()
    assert all((i * 171) >> 10 == i // 6 for i in range(192))
    a(f"s_mul_i32 {sH}, {sI}, 171")
    a(f"s_lshr_b32 {sH}, {sH}, 10")
    a(f"s_mul_i32 {sT0}, {sH}, 6")
    a(f"s_sub_u32 {sR}, {sI}, {sT0}")
    a(f"s_lshr_b32 {sTEAM}, {sI}, 4")
    a(f"s_and_b32 {sCG}, {sI}, 15")
    a(f"s_lshl_b32 {sLB}, {sWV}, 15")
    g.srd(a, 16, g.P_BX, 2048 * 1024)
    a(f"v_lshlrev_b32 {vL16}, 4, {vL}")
    a(f"s_mov_b32 {sSEG}, {sR}")
    a(f"s_mov_b32 {sBUFC}, {131072}")
    a(f"s_mov_b32 {sBUFN}, 0")
    a(f"s_lshl_b32 {sT2}, {sSEG}, 15")
    g.xtile_dma(a, vL, [vT0, vT1], sT2, sBUFC, sT0, sT1)
    a(f"s_lshl_b32 {sT2}, {sH}, 8")
    g.loader2_voff(a, vOFF, vL, "dense", 8192, sT2, True, vT0, sT0, sT1)
    g.loader2_traddr(a, vN0, vL, vT0)
    g.xtile_setup(a, None, vRD, vL, vT0, vT1)
    WB = 512 * 8192
    stages = []
    for ptr, dst in ((g.P_WK, ("a", 0)), (g.P_WV, ("a", 128)), (g.P_WQ, ("v", 128))):
        for s in range(8):
            stages.append(g.Stage2("coop", ptr, WB, vOFF, "dense", 8192, 64 * s, (dst[0], dst[1] + 16 * s)))
    g.run_loader2(a, stages, 0, vN0, vN1, vT0, vT1, sT0, sT1, sT2)
    g.event(a, opts, 1, vT0, vT1)
    g.wait_zdone(a, vT0, vT1)
    g.event(a, opts, 2, vT0, vT1)
    a(f"s_mul_i32 {sQKV}, {sH}, {64 * 24576}")
    a(f"s_add_u32 {sQKV}, {sQKV}, {g.QKV}")
    a(f"s_lshl_b32 {sT0}, {sWV}, 11")
    a(f"s_add_u32 {sQKV}, {sQKV}, {sT0}")
    a.label("L_wb_p1")
    a("s_waitcnt vmcnt(0)")
    a("s_barrier")
    a(f"s_cmp_lt_u32 {sSEG}, 6")
    a("s_cbranch_scc1 L_wb_noflag")
    a(f"s_cmp_lg_u32 {sWV}, 0")
    a("s_cbranch_scc1 L_wb_noflag")
    a(f"s_lshl_b32 {sT0}, {sH}, 6")
    a(f"s_add_u32 {sT0}, {sT0}, {sSEG}")
    a(f"s_sub_u32 {sT0}, {sT0}, 6")
    a(f"s_lshl_b32 {sT0}, {sT0}, 2")
    a(f"v_mov_b32 {vT0}, {sT0}")
    a(f"v_mov_b32 {vT1}, 1")
    g.set_flag(a, vT0, vT1, off=g.KVFLAG)
    a.label("L_wb_noflag")
    a(f"s_cmp_ge_u32 {sSEG}, 64")
    a("s_cbranch_scc1 L_wb_p1_done")
    a(f"s_add_u32 {sT2}, {sSEG}, 6")
    a(f"s_cmp_ge_u32 {sT2}, 64")
    a("s_cbranch_scc1 L_wb_nopf")
    a(f"s_lshl_b32 {sT2}, {sT2}, 15")
    g.xtile_dma(a, vL, [vT0, vT1], sT2, sBUFN, sT0, sT1)
    a.label("L_wb_nopf")
    for q in range(4):
        a(f"v_add_u32 {vRC[q]}, {sBUFC}, {vRD[q]}")
    g.qkv_gemm(a, vRC, None, True)
    a(f"s_mul_i32 {sT0}, {sSEG}, 24576")
    a(f"s_add_u32 {sT0}, {sT0}, {sQKV}")
    for j, (acc, off) in enumerate(((80, 8192), (96, 16384), (64, 0))):
        a(f"s_add_u32 {sT1}, {sT0}, {off}")
        for x in range(2):
            d = 32 + 8 * (j % 2) + 4 * x
            g.pack8(a, d, acc + 8 * x)
            a(f"buffer_store_dwordx4 {V(d, 4)}, {vL16}, {sWS}, {sT1} offen offset:{1024*x} sc1")
    a(f"s_add_u32 {sSEG}, {sSEG}, 6")
    a(f"s_mov_b32 {sT0}, {sBUFC}")
    a(f"s_mov_b32 {sBUFC}, {sBUFN}")
    a(f"s_mov_b32 {sBUFN}, {sT0}")
    a("s_branch L_wb_p1")
    a.label("L_wb_p1_done")
    g.event(a, opts, 3, vT0, vT1)
    if opts.get("wb_p1_only"):
        return
    a(f"s_lshl_b32 {sT0}, {sWV}, 20")
    a(f"s_lshl_b32 {sT1}, {sCG}, 6")
    a(f"s_add_u32 {sT2}, {sT0}, {sT1}")
    g.loader_voff(a, vOFF, vL, "ident", 1024, False, sT2, vT0, vT1, sT0)
    g.loader_traddr(a, None, None, vI, vL, sLB, vT0, vT1)
    vL16W = "v2"
    a(f"v_add_u32 {vL16W}, {sLB}, {vL16}")
    stages = [g.Stage(g.P_WO, 4096 * 1024, vOFF, "ident", 1024, 64 * s, 0, False, ("v", 128 + 16 * s)) for s in range(8)]
    stages += [g.Stage(g.P_WO, 4096 * 1024, vOFF, "ident", 1024, 64 * s, 0, False, ("v", 32), keep=True) for s in range(8, 16)]
    g.run_loader(a, stages, sLB, None, None, vI, sT0, l16w=vL16W)
    g.event(a, opts, 4, vT0, vT1)
    XB = 131072
    X_KM, X_VM, X_RED = XB, XB + 4096, XB + 8192
    vBIAS = 112
    vMOFF, vOUTOFF, vFL8, vSMP, vXW, vXR = "v17", "v18", "v19", "v20", "v3", "v4"
    sQT, sFH = "s44", "s45"
    a(f"s_and_b32 {sQT}, {sWV}, 1")
    a(f"s_lshr_b32 {sFH}, {sWV}, 1")
    a(f"v_and_b32 {vT0}, 15, {vL}")
    a(f"v_lshrrev_b32 {vT1}, 4, {vL}")
    a(f"s_lshl_b32 {sT0}, {sQT}, 4")
    a(f"v_add_u32 {vT2}, {sT0}, {vT0}")
    a(f"v_lshlrev_b32 v21, 2, {vT1}")
    a(f"v_sub_u32 {vT2}, {vT2}, v21")
    a(f"v_mov_b32 v21, 0")
    a(f"v_mov_b32 v22, 0xf149f2ca")
    for t in range(2):
        for r in range(4):
            a(f"v_cmp_le_i32 vcc, {16*t + r}, {vT2}")
            a(f"v_cndmask_b32 {V(vBIAS + 4*t + r)}, v22, v21, vcc")
    a(f"v_lshrrev_b32 v21, 2, {vT0}")
    a(f"v_and_b32 v22, 1, {vT0}")
    a(f"v_lshl_add_u32 v21, v21, 1, v22")
    a(f"v_lshlrev_b32 {vMOFF}, 4, v21")
    a(f"v_lshl_add_u32 {vMOFF}, {vT1}, 7, {vMOFF}")
    a(f"v_bfe_u32 v21, {vL}, 2, 3")
    a(f"v_and_b32 v22, 3, {vL}")
    a(f"v_lshlrev_b32 {vSMP}, 10, v21")
    a(f"v_lshl_add_u32 {vSMP}, v22, 5, {vSMP}")
    a(f"v_lshrrev_b32 v21, 5, {vL}")
    a(f"v_mul_u32_u24 v21, {7*128 + 24}, v21")
    a(f"v_add_u32 {vSMP}, {vSMP}, v21")
    a(f"v_lshlrev_b32 {vOUTOFF}, 11, {vT0}")
    a(f"v_lshl_add_u32 {vOUTOFF}, {vT1}, 4, {vOUTOFF}")
    a(f"s_lshl_b32 {sT0}, {sCG}, 6")
    a(f"s_add_u32 {sT0}, {sT0}, 1024")
    a(f"v_add_u32 {vOUTOFF}, {sT0}, {vOUTOFF}")
    a(f"v_and_b32 {vFL8}, 7, {vL}")
    a(f"s_lshl_b32 {sT0}, {sWV}, 3")
    a(f"v_add_u32 {vFL8}, {sT0}, {vFL8}")
    a(f"v_lshlrev_b32 {vFL8}, 2, {vFL8}")
    a(f"v_add_u32 {vXR}, {XB}, {vL16}")
    a(f"s_lshl_b32 {sT0}, {sWV}, 10")
    a(f"v_add_u32 {vXW}, {sT0}, {vXR}")
    PM = 120
    for k in (1, 2): a(f"v_mov_b32 {V(PM + k)}, 0")
    a(f"s_mov_b32 {sN}, 0")
    a(f"s_mov_b32 {sPAR}, 0")
    a("s_waitcnt lgkmcnt(0)")
    a("s_barrier")
    a.label("L_wb_round")
    a(f"s_add_u32 {sSEG}, {sN}, {sR}")
    a(f"s_cmp_ge_u32 {sSEG}, 64")
    a("s_cbranch_scc1 L_wb_att_done")
    Q, KX, SX, SMm, ACC = 24, 40, 96, 104, 72
    a(f"s_mul_i32 {sT0}, {sH}, {64 * 24576}")
    a(f"s_mul_i32 {sT1}, {sSEG}, 24576")
    a(f"s_add_u32 {sT0}, {sT0}, {sT1}")
    a(f"s_add_u32 {sQKV}, {sT0}, {g.QKV}")
    a(f"s_lshl_b32 {sT1}, {sQT}, 10")
    a(f"s_add_u32 {sT1}, {sT1}, {sQKV}")
    for k in range(4):
        if k == 2: a(f"s_add_u32 {sT1}, {sT1}, 4096")
        a(f"buffer_load_dwordx4 {V(Q + 4*k, 4)}, {vL16}, {sWS}, {sT1} offen offset:{2048*(k & 1)} sc1")
    a(f"s_add_u32 {sT1}, {sQKV}, 8192")
    for k in range(8):
        if k == 4: a(f"s_add_u32 {sT1}, {sT1}, 4096")
        a(f"buffer_load_dwordx4 {V(KX + 4*k, 4)}, {vL16}, {sWS}, {sT1} offen offset:{1024*(k & 3)} sc1")
    a("s_waitcnt vmcnt(0)")
    for k in range(4):
        for t in range(2):
            d = V(SX + 4*t, 4)
            a(f"{MF} {d}, {V(KX + 8*k + 4*t, 4)}, {V(Q + 4*k, 4)}, {d if k else V(vBIAS + 4*t, 4)}")
    sHS = "s46"
    a(f"s_lshl_b32 {sHS}, {sSEG}, 13")
    a(f"s_add_u32 {sHS}, {sHS}, {g.HIST}")
    a.label("L_wb_mem")
    g.poll(a, sWS, vSMP, vT1, "v_cmp_eq_u32", -1, soff=sHS, sleep=opts.get("wsl", 2))
    MFR = 40
    a(f"s_add_u32 {sT1}, {sHS}, 4096")
    def mld(k):
        a(f"buffer_load_dwordx4 {V(MFR + 4*(k % 8), 4)}, {vMOFF}, {sWS}, {sHS if k < 8 else sT1} offen offset:{512*(k % 8)} sc1")
    for k in range(8): mld(k)
    a(f"v_mov_b32 {vT2}, 0")
    for k in range(16):
        a(f"s_waitcnt vmcnt({min(15, k + 7) - k})")
        X = V(MFR + 4*(k % 8), 4)
        for t in range(2):
            d = V(ACC + 4*t, 4)
            a(f"{MF} {d}, {g.wfrag('a', 0, k, t)}, {X}, {d if k else 0}")
        a(f"v_max3_u32 {vT2}, {vT2}, {V(MFR + 4*(k % 8))}, {V(MFR + 4*(k % 8) + 2)}")
        for t in range(2):
            d = V(ACC + 8 + 4*t, 4)
            a(f"{MF} {d}, {X}, {g.wfrag('a', 128, k, t)}, {d if k else 0}")
        if k + 8 < 16: mld(k + 8)
    a(f"v_cmp_eq_u32 vcc, -1, {vT2}")
    a(f"s_sub_u32 {g.sBUD}, {g.sBUD}, 1")
    a("s_cbranch_scc1 L_exit")
    a("s_cbranch_vccnz L_wb_mem")
    VX, KM, VM = 40, 56, 88
    a(f"s_lshl_b32 {sT1}, {sFH}, 12")
    a(f"s_add_u32 {sT1}, {sT1}, {sQKV}")
    a(f"s_add_u32 {sT1}, {sT1}, 16384")
    for k in range(4):
        a(f"buffer_load_dwordx4 {V(VX + 4*k, 4)}, {vL16}, {sWS}, {sT1} offen offset:{1024*k} sc1")
    g.pack8(a, 88, ACC)
    a(f"v_cvt_pk_bf16_f32 v92, {V(ACC + 8)}, {V(ACC + 9)}")
    a(f"v_cvt_pk_bf16_f32 v93, {V(ACC + 12)}, {V(ACC + 13)}")
    a(f"ds_write_b128 {vXW}, v[88:91]")
    a(f"ds_write_b64 {vXW}, v[92:93] offset:4096")
    a("s_waitcnt lgkmcnt(0)")
    a("s_barrier")
    for k in range(4):
        a(f"ds_read_b128 {V(KM + 4*k, 4)}, {vXR} offset:{1024*k}")
    a(f"s_lshl_b32 {sT1}, {sFH}, 11")
    a(f"v_add_u32 {vT0}, {sT1}, {vXR}")
    for k in range(2):
        a(f"ds_read_b64 {V(VM + 2*k, 2)}, {vT0} offset:{4096 + 1024*k}")
    for k in range(4):
        a(f"s_waitcnt lgkmcnt({5 - k})")
        d = V(SMm, 4)
        a(f"{MF} {d}, {V(KM + 4*k, 4)}, {V(Q + 4*k, 4)}, {d if k else 0}")
    m, t_, su, mc = "v108", "v109", "v110", "v111"
    S0 = SX
    a(f"v_max3_f32 {m}, {V(S0)}, {V(S0 + 1)}, {V(S0 + 2)}")
    a(f"v_max3_f32 {m}, {m}, {V(S0 + 3)}, {V(S0 + 4)}")
    a(f"v_max3_f32 {m}, {m}, {V(S0 + 5)}, {V(S0 + 6)}")
    a(f"v_max3_f32 {m}, {m}, {V(S0 + 7)}, {V(S0 + 8)}")
    a(f"v_max_f32 {m}, {m}, {V(S0 + 9)}")
    g.xlane_reduce(a, "v_max_f32", m, t_, (16, 32))
    a(f"s_mov_b32 {sT1}, {g.SCALE_B}")
    a(f"v_mul_f32 {mc}, {sT1}, {m}")
    for r in range(10):
        a(f"v_fma_f32 {V(S0 + r)}, {V(S0 + r)}, {sT1}, -{mc}")
    for r in range(10):
        a(f"v_exp_f32 {V(S0 + r)}, {V(S0 + r)}")
    PX = 92
    g.pack8(a, PX, S0)
    a(f"v_cvt_pk_bf16_f32 {V(PM)}, {V(S0 + 8)}, {V(S0 + 9)}")
    a(f"v_cvt_pk_bf16_f32 {V(PM + 3)}, {V(S0 + 8)}, {V(S0 + 9)}")
    O = 72
    a("s_waitcnt vmcnt(0) lgkmcnt(0)")
    for t in range(4):
        a(f"{MF} {V(O + 4*t, 4)}, {V(VX + 4*t, 4)}, {V(PX, 4)}, 0")
    for t in range(4):
        pm = V(PM + 2*(t & 1), 2)
        a(f"{g.MF16} {V(O + 4*t, 4)}, {V(VM + 2*(t >> 1), 2)}, {pm}, {V(O + 4*t, 4)}")
    a(f"v_add_f32 {su}, {V(S0 + 8)}, {V(S0 + 9)}")
    for r in range(8):
        a(f"v_add_f32 {su}, {su}, {V(S0 + r)}")
    g.xlane_reduce(a, "v_add_f32", su, t_, (16, 32))
    a(f"v_rcp_f32 {su}, {su}")
    for r in range(16):
        a(f"v_mul_f32 {V(O + r)}, {V(O + r)}, {su}")
    g.pack8(a, 56, O)
    g.pack8(a, 60, O + 8)
    a(f"s_lshl_b32 {sT0}, {sSEG}, 1")
    a(f"s_add_u32 {sT0}, {sT0}, {sQT}")
    a(f"s_lshl_b32 {sT0}, {sT0}, 17")
    a(f"s_lshl_b32 {sT1}, {sH}, 12")
    a(f"s_add_u32 {sT0}, {sT0}, {sT1}")
    a(f"s_lshl_b32 {sT1}, {sFH}, 11")
    a(f"s_add_u32 {sT0}, {sT0}, {sT1}")
    a(f"s_add_u32 {sT0}, {sT0}, {g.OB}")
    a(f"buffer_store_dwordx4 {V(56, 4)}, {vL16}, {sWS}, {sT0} offen sc1")
    a(f"buffer_store_dwordx4 {V(60, 4)}, {vL16}, {sWS}, {sT0} offen offset:1024 sc1")
    a("s_waitcnt vmcnt(0)")
    a("s_barrier")
    a(f"s_cmp_lg_u32 {sWV}, 0")
    a("s_cbranch_scc1 L_wb_att_done")
    a(f"s_lshl_b32 {sT0}, {sSEG}, 5")
    a(f"s_add_u32 {sT0}, {sT0}, {sH}")
    a(f"s_lshl_b32 {sT0}, {sT0}, 2")
    a(f"s_add_u32 {sT0}, {sT0}, {g.OFLAG}")
    a(f"v_mov_b32 {vT0}, {sT0}")
    a(f"v_mov_b32 {vT1}, 1")
    g.set_flag(a, vT0, vT1)
    a.label("L_wb_att_done")
    a(f"s_lshr_b32 {sT0}, {sTEAM}, 1")
    a(f"s_add_u32 {sSO}, {sN}, {sT0}")
    a(f"s_cmp_ge_u32 {sSO}, 64")
    a("s_cbranch_scc1 L_wb_out_done")
    a(f"s_lshl_b32 {sT0}, {sSO}, 7")
    a(f"s_add_u32 {sT0}, {sT0}, {g.OFLAG}")
    g.poll(a, sWS, vFL8, vT1, "v_cmp_ne_u32", 1, soff=sT0, sleep=opts.get("wsl", 2))
    a(f"s_and_b32 {sT2}, {sTEAM}, 1")
    a(f"s_lshl_b32 {sT0}, {sSO}, 1")
    a(f"s_add_u32 {sT2}, {sT0}, {sT2}")
    a(f"s_lshl_b32 {sT0}, {sT2}, 17")
    a(f"s_lshl_b32 {sT1}, {sWV}, 15")
    a(f"s_add_u32 {sT0}, {sT0}, {sT1}")
    a(f"s_add_u32 {sT0}, {sT0}, {g.OB}")
    OF, WR, D = 24, 88, 104
    def old(k):
        if k and k % 4 == 0: a(f"s_add_u32 {sT0}, {sT0}, 4096")
        a(f"buffer_load_dwordx4 {V(OF + 4*(k % 16), 4)}, {vL16}, {sWS}, {sT0} offen offset:{1024*(k & 3)} sc1")
    def wld(k):
        kk = k - 16
        for cb in range(2):
            a(f"ds_read_b128 {V(WR + 8*(k & 1) + 4*cb, 4)}, {vL16W} offset:{(kk >> 1)*4096 + cb*2048 + (kk & 1)*1024}")
    for k in range(16): old(k)
    wld(16); wld(17)
    for k in range(32):
        if k < 16: a(f"s_waitcnt vmcnt({min(31, k + 15) - k})")
        else: a(f"s_waitcnt vmcnt({min(31, k + 15) - k}) lgkmcnt({2 if k < 31 else 0})")
        for cb in range(2):
            d = V(D + 4*cb, 4)
            w = g.wfrag('v', 128, k, cb) if k < 16 else V(WR + 8*(k & 1) + 4*cb, 4)
            a(f"{MF} {d}, {w}, {V(OF + 4*(k % 16), 4)}, {d if k else 0}")
        if k + 16 < 32: old(k + 16)
        if k >= 16 and k + 2 < 32: wld(k + 2)
    a(f"s_lshl_b32 {sT0}, {sWV}, 11")
    a(f"s_add_u32 {sT0}, {sT0}, {sPAR}")
    a(f"v_add_u32 {vT0}, {sT0}, {vXR}")
    a(f"ds_write_b128 {vT0}, {V(D, 4)} offset:8192")
    a(f"ds_write_b128 {vT0}, {V(D + 4, 4)} offset:9216")
    a("s_waitcnt lgkmcnt(0)")
    a("s_barrier")
    a(f"s_cmp_lg_u32 {sWV}, 0")
    a("s_cbranch_scc1 L_wb_out_skip")
    for k in range(6):
        a(f"ds_read_b128 {V(24 + 4*k, 4)}, {vT0} offset:{8192 + 2048 + 1024*k}")
    a("s_waitcnt lgkmcnt(0)")
    for k in range(3):
        for r in range(8):
            a(f"v_add_f32 {V(D + r)}, {V(D + r)}, {V(24 + 8*k + r)}")
    g.pack8(a, 124, D)
    a(f"s_lshl_b32 {sT2}, {sT2}, 15")
    a(f"buffer_store_dwordx4 {V(124, 4)}, {vOUTOFF}, {g.sOUT}, {sT2} offen")
    a.label("L_wb_out_skip")
    a(f"s_xor_b32 {sPAR}, {sPAR}, 8192")
    a.label("L_wb_out_done")
    a(f"s_add_u32 {sN}, {sN}, 6")
    a(f"s_cmp_lt_u32 {sN}, 64")
    a("s_cbranch_scc1 L_wb_round")
    a("s_waitcnt vmcnt(0)")
    g.event(a, opts, 5, vT0, vT1)
```

```python
import sys, os
sys.path.insert(0, os.path.dirname(os.path.abspath(__file__)))
from asmlib import *

NAME = "concat_heads__linear_attn_block__memory_aug_recurrent_mem_tr__prompt"
KN = NAME + "_kernel"

KVFLAG, OFLAG, KMFLAG, AFLAG, OAFLAG = 0x0000, 0x2000, 0x4000, 0x5000, 0x5400
INBOX, RING = 0x40000, 0x80000
KVP, PQ, OA = 0x100000, 0x200000, 0x400000
HIST, OB, QKV = 0x800000, 0x1800000, 0x2800000
DBGDUMP = 0x6000000
WS_BYTES = 0x10000000
D_CNT0, D_RBAR, D_CNT, D_ZDONE = 0, 64, 128, 192
LDS_BYTES = 163840
LDS_TICKET = LDS_BYTES - 16

sWS, sDBG, sW, sX, sOUT = S(4, 4), S(8, 4), S(12, 4), S(16, 4), S(20, 4)
sWV, sTK, sXCC, sBUD = "s24", "s25", "s26", "s27"
P_AX, P_AWQKV, P_AWO, P_BX, P_MEM0, P_WQ, P_WK, P_WV, P_WO, P_OUT, P_DBG, P_WS = 64, 66, 68, 70, 72, 74, 76, 78, 80, 84, 86, 88

LOG2E = 1.4426950408889634
import struct
def f2u(x): return struct.unpack("<I", struct.pack("<f", x))[0]
SCALE_B = f2u(128 ** -0.5 * LOG2E)

MF = "v_mfma_f32_16x16x32_bf16"
MF16 = "v_mfma_f32_16x16x16_bf16"
SM = "v_smfmac_f32_16x16x64_bf16"

def srd(a, base, ptr, nbytes):
    a(f"s_mov_b32 s{base}, s{ptr}")
    a(f"s_and_b32 s{base+1}, s{ptr+1}, 0xffff")
    a(f"s_mov_b32 s{base+2}, {nbytes}")
    a(f"s_mov_b32 s{base+3}, 0x20000")

def poll(a, srd_, vaddr, vtmp, cmp_fail, thr, soff="0", off=0, sleep=2):
    L = a.newlabel("poll"); D = a.newlabel("polld")
    a.label(L)
    a(f"buffer_load_dword {vtmp}, {vaddr}, {srd_}, {soff} offen offset:{off} sc1")
    a("s_waitcnt vmcnt(0)")
    a(f"{cmp_fail} vcc, {thr}, {vtmp}")
    a(f"s_cbranch_vccz {D}")
    a(f"s_sub_u32 {sBUD}, {sBUD}, 1")
    a("s_cbranch_scc1 L_exit")
    a(f"s_sleep {sleep}")
    a(f"s_branch {L}")
    a.label(D)

def wait_zdone(a, vt0, vt1):
    a(f"v_mov_b32 {vt0}, {D_ZDONE}")
    poll(a, sDBG, vt0, vt1, "v_cmp_gt_u32", 32)

def set_flag(a, vaddr, vval, soff="0", off=0):
    a("s_mov_b64 exec, 1")
    a(f"buffer_store_dword {vval}, {vaddr}, {sWS}, {soff} offen offset:{off} sc1")
    a("s_mov_b64 exec, -1")

ROWMAP = {
    "sparse": (lambda gb, u: (16, 4, 8, 1), lambda m: 32 * (m >> 1) + 2 * (m & 1)),
    "sparse2": (lambda gb, u: (128, 4, 64, 1), lambda m: 256 * (m >> 1) + 2 * (m & 1)),
    "dense":  (lambda gb, u: (16, 8, 2, 1), lambda m: 32 * (m >> 1) + 4 * (m & 1)),
    "rwo":    (lambda gb, u: (4, 32, 16, 1), lambda m: 8 * (m >> 1) + 2 * (m & 1)),
    "ident":  (lambda gb, u: (8, 4, 2, 1), lambda m: 16 * m),
}

def loader_voff(a, vd, vl, rowmap, RS, natural, scol, vt0, vt1, stmp):
    ch, cl, uh, ul = ROWMAP[rowmap][0](0, 0)
    a(f"v_bfe_u32 {vt0}, {vl}, 5, 1")
    a(f"v_mul_u32_u24 {vd}, {ch}, {vt0}")
    for bit, co in ((4, cl), (3, uh), (2, ul)):
        a(f"v_bfe_u32 {vt0}, {vl}, {bit}, 1")
        a(f"v_mul_u32_u24 {vt0}, {co}, {vt0}")
        a(f"v_add_u32 {vd}, {vd}, {vt0}")
    a(f"s_mov_b32 {stmp}, {RS}")
    a(f"v_mul_lo_u32 {vd}, {vd}, {stmp}")
    a(f"v_and_b32 {vt0}, 3, {vl}")
    if natural:
        a(f"v_bfe_u32 {vt1}, {vl}, 4, 1")
        a(f"v_lshlrev_b32 {vt1}, 1, {vt1}")
        a(f"v_xor_b32 {vt0}, {vt0}, {vt1}")
    a(f"v_lshlrev_b32 {vt0}, 4, {vt0}")
    a(f"v_add3_u32 {vd}, {vd}, {vt0}, {scol}")

def loader_traddr(a, vn0, vn1, vi, vl, sbase, vt0, vt1):
    a(f"v_lshrrev_b32 {vt0}, 2, {vl}")
    a(f"v_lshlrev_b32 {vt0}, 6, {vt0}")
    a(f"v_add_u32 {vt0}, {sbase}, {vt0}")
    if vi is not None:
        a(f"v_and_b32 {vt1}, 3, {vl}")
        a(f"v_lshlrev_b32 {vt1}, 4, {vt1}")
        a(f"v_add_u32 {vi}, {vt0}, {vt1}")
    if vn0 is not None:
        a(f"v_and_b32 {vt1}, 3, {vl}")
        a(f"v_lshlrev_b32 {vt1}, 3, {vt1}")
        a(f"v_add_u32 {vt0}, {vt0}, {vt1}")
        a(f"v_bfe_u32 {vt1}, {vl}, 4, 1")
        a(f"v_lshlrev_b32 {vt1}, 5, {vt1}")
        a(f"v_add_u32 {vn0}, {vt0}, {vt1}")
        a(f"v_xor_b32 {vt1}, 32, {vt1}")
        a(f"v_add_u32 {vn1}, {vt0}, {vt1}")

class Stage:
    def __init__(self, ptr, nbytes, voff, rowmap, RS, row0, colb, natural, dst, keep=False):
        self.__dict__.update(locals())

def run_loader(a, stages, sLB, vn0, vn1, vi, stmp, l16w=None, vtmp=None, hooks=None, nt="", extra_before=0):
    hooks = hooks or {}
    cur = [None]
    order = []
    for _ in range(extra_before): order.append(None)
    def issue(i):
        st = stages[i]
        if cur[0] != st.ptr:
            srd(a, 12, st.ptr, st.nbytes); cur[0] = st.ptr
        slot = i % 8
        for m in range(4):
            so = (st.row0 + ROWMAP[st.rowmap][1](m)) * st.RS + st.colb
            a(f"s_add_u32 m0, {sLB}, {slot*4096 + m*1024}")
            a(f"s_mov_b32 {stmp}, {so}")
            a(f"buffer_load_dwordx4 {st.voff}, {sW}, {stmp} offen {nt} lds")
            order.append(i)
    n = len(stages)
    for i in range(min(8, n)): issue(i)
    for i in range(n):
        st = stages[i]
        last = max(k for k, x in enumerate(order) if x == i)
        a(f"s_waitcnt vmcnt({min(63, len(order) - 1 - last)})")
        slot = i % 8
        kind, base = st.dst
        R = V if kind == "v" else A
        for t in range(2):
            for m in range(4):
                off = slot * 4096 + m * 1024
                if st.natural:
                    a(f"ds_read_b64_tr_b16 {R(base + 8*t + 2*m, 2)}, {vn0 if t == 0 else vn1} offset:{off}")
                else:
                    a(f"ds_read_b64_tr_b16 {R(base + 8*t + 2*m, 2)}, {vi} offset:{off + 8*t}")
        a("s_waitcnt lgkmcnt(0)")
        if st.keep:
            for q in range(4):
                a(f"ds_write_b128 {l16w}, {V(base + 4*q, 4)} offset:{slot*4096 + q*1024}")
        if i + 8 < n: issue(i + 8)
        if i in hooks:
            fn, nops = hooks[i]
            fn()
            if nops is None: order.clear()
            else:
                for _ in range(nops): order.append(None)


class Stage2:
    def __init__(self, kind, ptr, nbytes, voff, rowmap, RS, row0, dst, m=0, keep=False):
        self.__dict__.update(locals())

def loader2_voff(a, vd, vl, rowmap, RS, scol, coop, vt0, st0, st1):
    ch, cl, uh, ul = ROWMAP[rowmap][0](0, 0)
    a(f"v_bfe_u32 {vt0}, {vl}, 5, 1")
    a(f"v_mul_u32_u24 {vd}, {uh}, {vt0}")
    a(f"v_bfe_u32 {vt0}, {vl}, 4, 1")
    a(f"v_mul_u32_u24 {vt0}, {ul}, {vt0}")
    a(f"v_add_u32 {vd}, {vd}, {vt0}")
    if coop:
        m1, m2 = ROWMAP[rowmap][1](1), ROWMAP[rowmap][1](2)
        a(f"s_and_b32 {st0}, {sWV}, 1")
        a(f"s_mul_i32 {st0}, {st0}, {m1}")
        a(f"s_lshr_b32 {st1}, {sWV}, 1")
        a(f"s_mul_i32 {st1}, {st1}, {m2}")
        a(f"s_add_u32 {st0}, {st0}, {st1}")
        a(f"v_add_u32 {vd}, {st0}, {vd}")
    a(f"s_mov_b32 {st0}, {RS}")
    a(f"v_mul_lo_u32 {vd}, {vd}, {st0}")
    a(f"v_lshrrev_b32 {vt0}, 3, {vl}")
    a(f"v_and_b32 {vt0}, 6, {vt0}")
    a(f"v_xor_b32 {vt0}, {vt0}, {vl}")
    a(f"v_and_b32 {vt0}, 15, {vt0}")
    a(f"v_lshlrev_b32 {vt0}, 4, {vt0}")
    a(f"v_add3_u32 {vd}, {vd}, {vt0}, {scol}")

def loader2_traddr(a, vb, vl, vt0):
    a(f"v_lshrrev_b32 {vt0}, 2, {vl}")
    a(f"v_lshlrev_b32 {vb}, 8, {vt0}")
    a(f"v_and_b32 {vt0}, 7, {vt0}")
    a(f"v_lshl_add_u32 {vb}, {vt0}, 5, {vb}")
    a(f"v_and_b32 {vt0}, 3, {vl}")
    a(f"v_lshl_add_u32 {vb}, {vt0}, 3, {vb}")

def run_loader2(a, stages, ldsbase, vb, vo, vc0, vc1, st0, st1, st2, l16=None, keepregs=None, hooks=None, nt=""):
    hooks = hooks or {}
    cur = [None]; curo = [None]
    order = []
    a(f"s_lshl_b32 {st2}, {sWV}, 12")
    a(f"s_add_u32 {st2}, {st2}, {ldsbase}")
    def issue(i):
        st = stages[i]
        if cur[0] != st.ptr:
            srd(a, 12, st.ptr, st.nbytes); cur[0] = st.ptr
        if curo[0] != st.voff:
            a(f"v_xor_b32 {vo}, 0x80, {st.voff}"); curo[0] = st.voff
        slot = i % 8
        ch, cl, uh, ul = ROWMAP[st.rowmap][0](0, 0)
        for gb in range(4):
            row = st.row0 + ch * (gb >> 1) + cl * (gb & 1) + (ROWMAP[st.rowmap][1](st.m) if st.kind == "priv" else 0)
            a(f"s_add_u32 m0, {st2}, {slot*16384 + gb*1024}")
            a(f"s_mov_b32 {st0}, {row * st.RS}")
            a(f"buffer_load_dwordx4 {vo if gb & 1 else st.voff}, {sW}, {st0} offen {nt} lds")
            order.append(i)
    n = len(stages)
    for i in range(min(8, n)): issue(i)
    pend = None
    def flush():
        nonlocal pend
        if pend is not None:
            base, slot = pend
            a(f"s_add_u32 {st0}, {st2}, {slot*16384}")
            a(f"v_add_u32 {vc0}, {st0}, {l16}")
            for q in range(4):
                a(f"ds_write_b128 {vc0}, {V(base + 4*q, 4)} offset:{q*1024}")
            pend = None
    for i in range(n):
        st = stages[i]
        last = max(k for k, x in enumerate(order) if x == i)
        a(f"s_waitcnt vmcnt({min(63, len(order) - 1 - last)})")
        a("s_barrier")
        if i >= 1 and i + 7 < n: issue(i + 7)
        flush()
        slot = i % 8
        kind, base = st.dst
        if st.keep: base = keepregs[i & 1]
        R = V if kind == "v" else A
        if st.kind == "coop":
            a(f"s_lshl_b32 {st0}, {sWV}, 6")
            a(f"v_xor_b32 {vc0}, {st0}, {vb}")
            a(f"v_add_u32 {vc0}, {ldsbase + slot*16384}, {vc0}")
            a(f"v_xor_b32 {vc1}, 32, {vc0}")
            for t in range(2):
                for m in range(4):
                    a(f"ds_read_b64_tr_b16 {R(base + 8*t + 2*m, 2)}, {vc1 if t else vc0} offset:{m*4096}")
        else:
            a(f"s_add_u32 {st0}, {st2}, {slot*16384}")
            a(f"v_lshrrev_b32 {vc1}, 4, {vb}")
            a(f"v_and_b32 {vc1}, 32, {vc1}")
            a(f"v_xor_b32 {vc0}, {vc1}, {vb}")
            a(f"v_add_u32 {vc0}, {st0}, {vc0}")
            for sw in range(2):
                for n4 in range(4):
                    x = (576 if sw else 0) ^ (64 * n4)
                    if x: a(f"v_xor_b32 {vc1}, {x}, {vc0}")
                    a(f"ds_read_b64_tr_b16 {R(base + 32*sw + 8*n4 + 2*st.m, 2)}, {vc1 if x else vc0}")
        a("s_waitcnt lgkmcnt(0)")
        if st.keep: pend = (base, slot)
        if i in hooks:
            fn, nops = hooks[i]
            fn()
            for _ in range(nops): order.append(None)
    if pend is not None:
        a("s_barrier")
        flush()

def xtile_setup(a, vdma, vrd, vl, vt0, vt1):
    a(f"v_and_b32 {vt0}, 15, {vl}")
    a(f"v_lshrrev_b32 {vt1}, 4, {vl}")
    for kq in range(4):
        a(f"v_add_u32 {vrd[kq]}, {4*kq}, {vt1}")
        a(f"v_xor_b32 {vrd[kq]}, {vrd[kq]}, {vt0}")
        a(f"v_lshlrev_b32 {vrd[kq]}, 4, {vrd[kq]}")
        a(f"v_lshl_add_u32 {vrd[kq]}, {vt0}, 10, {vrd[kq]}")

def xtile_dma(a, vl, vt, srow0, sbuf, stmp, stmp2):
    a(f"s_and_b32 {stmp}, {sWV}, 1")
    a(f"s_lshl_b32 {stmp}, {stmp}, 3")
    a(f"v_xor_b32 {vt[0]}, {stmp}, {vl}")
    a(f"s_lshl_b32 {stmp}, {sWV}, 13")
    a(f"s_add_u32 {stmp2}, {stmp}, {srow0}")
    a(f"s_add_u32 {stmp}, {stmp}, {sbuf}")
    for i in range(8):
        a(f"v_xor_b32 {vt[1]}, {i}, {vt[0]}")
        a(f"v_lshlrev_b32 {vt[1]}, 4, {vt[1]}")
        a(f"s_add_u32 m0, {stmp}, {i*1024}")
        if i: a(f"s_add_u32 {stmp2}, {stmp2}, 1024")
        a(f"buffer_load_dwordx4 {vt[1]}, {sX}, {stmp2} offen lds")

def wfrag(kind, base, k, t):
    R = V if kind == "v" else A
    return R(base + 16 * (k >> 1) + 8 * t + 4 * (k & 1), 4)

def qkv_gemm(a, vrd, vbuf, ktrans, XR=32, AQ=64, AK=80, AV=96):
    seq = [(k, tt) for k in range(16) for tt in range(2)]
    def rd(i):
        k, tt = seq[i]
        a(f"ds_read_b128 {V(XR + 4*(i % 4), 4)}, {vrd[k & 3]} offset:{(k >> 2)*256 + tt*16384}")
    for i in range(3): rd(i)
    for i, (k, tt) in enumerate(seq):
        nleft = min(len(seq) - 1, i + 2) - i
        a(f"s_waitcnt lgkmcnt({nleft})")
        X = V(XR + 4 * (i % 4), 4)
        for t in range(2):
            d = V(AQ + 8*tt + 4*t, 4)
            a(f"{MF} {d}, {wfrag('v', 128, k, t)}, {X}, {d if k else 0}")
        if i + 3 < len(seq): rd(i + 3)
        for t in range(2):
            if ktrans:
                d = V(AK + 8*tt + 4*t, 4)
                a(f"{MF} {d}, {wfrag('a', 0, k, t)}, {X}, {d if k else 0}")
            else:
                d = V(AK + 8*t + 4*tt, 4)
                a(f"{MF} {d}, {X}, {wfrag('a', 0, k, t)}, {d if k else 0}")
        for t in range(2):
            d = V(AV + 8*t + 4*tt, 4)
            a(f"{MF} {d}, {X}, {wfrag('a', 128, k, t)}, {d if k else 0}")

def pack8(a, dst, src):
    for q in range(4):
        a(f"v_cvt_pk_bf16_f32 {V(dst+q)}, {V(src+2*q)}, {V(src+2*q+1)}")

def xlane_reduce(a, op, v, t, steps):
    for st in steps:
        if st == 8:
            a(f"{op}_dpp {v}, {v}, {v} row_ror:8 row_mask:0xf bank_mask:0xf")
        else:
            a(f"v_mov_b32 {t}, {v}")
            a(f"v_permlane{st}_swap_b32 {v}, {t}")
            a(f"{op} {v}, {v}, {t}")

EVBASE = DBGDUMP + 0x200000
def event(a, opts, k, vt0, vt1, l16=None):
    if not opts.get("ev"): return
    L = a.newlabel("ev")
    a(f"s_cmp_lg_u32 {sWV}, 0")
    a(f"s_cbranch_scc1 {L}")
    a("s_memrealtime s[90:91]")
    a("s_memtime s[92:93]")
    a(f"s_lshl_b32 s94, {sXCC}, 5")
    a(f"s_add_u32 s94, s94, {sTK}")
    a(f"s_lshl_b32 s94, s94, 7")
    a(f"s_add_u32 s94, s94, {EVBASE + 8*k}")
    a("s_waitcnt lgkmcnt(0)")
    a(f"v_mov_b32 {vt0}, s90")
    a(f"v_writelane_b32 {vt0}, s92, 1")
    if l16: a(f"v_lshrrev_b32 {vt1}, 2, {l16}")
    else: a(f"v_lshlrev_b32 {vt1}, 2, v0")
    a("s_mov_b64 exec, 3")
    a(f"buffer_store_dword {vt0}, {vt1}, {sWS}, s94 offen")
    a("s_waitcnt vmcnt(0)")
    a("s_mov_b64 exec, -1")
    a.label(L)

from role_wb import gen_wb
from role_r import gen_r
from role_wa import gen_wa

def generate(opts=None):
    opts = opts or {}
    a = Asm()
    a.raw(open(os.path.join(os.path.dirname(os.path.abspath(__file__)), "header.txt")).read().rstrip("\n"))
    a.raw(f"; @launch grid=(256,1,1) block=(256,1,1) lds={LDS_BYTES}")
    a.raw('.amdgcn_target "amdgcn-amd-amdhsa--gfx950"')
    a.raw(".text")
    a.raw(f".globl {KN}")
    a.raw(".p2align 8")
    a.raw(f".type {KN},@function")
    a.raw(f"{KN}:")
    a("s_cmp_ge_u32 s2, 256")
    a("s_cbranch_scc1 L_exit")
    a("s_load_dwordx16 s[64:79], s[0:1], 0")
    a("s_load_dwordx8 s[80:87], s[0:1], 64")
    a("s_load_dwordx2 s[88:89], s[0:1], 96")
    a(f"s_getreg_b32 {sXCC}, hwreg(HW_REG_XCC_ID, 0, 4)")
    a("v_lshrrev_b32 v1, 6, v0")
    a(f"v_readfirstlane_b32 {sWV}, v1")
    a("v_and_b32 v0, 63, v0")
    a(f"s_mov_b32 {sBUD}, 0x80000")
    a("s_waitcnt lgkmcnt(0)")
    srd(a, 4, P_WS, WS_BYTES)
    srd(a, 8, P_DBG, 256)
    srd(a, 20, P_OUT, 2048 * 1024 * 2)
    a(f"s_cmp_lg_u32 {sWV}, 0")
    a("s_cbranch_scc1 L_tk_wait")
    a(f"s_lshl_b32 s28, {sXCC}, 2")
    a(f"s_add_u32 s28, s28, {D_CNT}")
    a(f"s_cmp_eq_u32 {sXCC}, 0")
    a(f"s_cselect_b32 s28, {D_CNT0}, s28")
    a("v_mov_b32 v1, s28")
    a("v_mov_b32 v2, 1")
    a(f"v_mov_b32 v3, {LDS_TICKET}")
    a("s_mov_b64 exec, 1")
    a(f"buffer_atomic_add v2, v1, {sDBG}, 0 offen sc0")
    a("s_waitcnt vmcnt(0)")
    a("ds_write_b32 v3, v2")
    a("s_waitcnt lgkmcnt(0)")
    a("s_mov_b64 exec, -1")
    a.label("L_tk_wait")
    a("s_barrier")
    a(f"v_mov_b32 v3, {LDS_TICKET}")
    a("ds_read_b32 v2, v3")
    a("s_waitcnt lgkmcnt(0)")
    a(f"v_readfirstlane_b32 {sTK}, v2")
    a("s_barrier")
    a(f"s_cmp_ge_u32 {sTK}, 32")
    a("s_cbranch_scc1 L_exit")
    event(a, opts, 0, "v1", "v2")
    a(f"s_cmp_eq_u32 {sXCC}, 0")
    a("s_cbranch_scc1 L_role_r")
    a(f"s_cmp_eq_u32 {sXCC}, 7")
    a("s_cbranch_scc1 L_role_wa")
    a(f"s_cmp_gt_u32 {sXCC}, 7")
    a("s_cbranch_scc0 L_role_wb")
    a.label("L_exit")
    a("s_endpgm")
    g = sys.modules[__name__]
    a.label("L_role_r")
    gen_r(a, g, opts)
    a("s_endpgm")
    a.label("L_role_wb")
    gen_wb(a, g, opts)
    a("s_endpgm")
    a.label("L_role_wa")
    gen_wa(a, g, opts)
    a("s_endpgm")
    a.raw(f""".section .rodata,"a"
.p2align 6
.amdhsa_kernel {KN}
  .amdhsa_next_free_vgpr 512
  .amdhsa_next_free_sgpr 96
  .amdhsa_accum_offset 256
  .amdhsa_group_segment_fixed_size 0
  .amdhsa_kernarg_size 104
  .amdhsa_user_sgpr_count 2
  .amdhsa_user_sgpr_kernarg_segment_ptr 1
  .amdhsa_system_sgpr_workgroup_id_x 1
  .amdhsa_float_denorm_mode_32 3
.end_amdhsa_kernel""")
    return a.text()

if __name__ == "__main__":
    opts = {}
    out = f"cdna_kernels/{NAME}.s"
    for x in sys.argv[1:]:
        if x.startswith("-o"): out = x[2:]
        else:
            k, _, v = x.partition("=")
            opts[k] = int(v) if v.lstrip("-").isdigit() else (v or 1)
    sys.modules["gen"] = sys.modules["__main__"]
    t = generate(opts)
    open(out, "w").write(t)
    print("wrote", out, len(t), "bytes", t.count("\n"), "lines")
```
